```python
import torch

def _softmax(x, axis=-1):
    return torch.softmax(x, dim=axis)
def _gelu(x):
    return torch.nn.functional.gelu(x, approximate="tanh")
def _silu(x):
    return torch.nn.functional.silu(x)
def _sigmoid(x):
    return torch.sigmoid(x)
def _layernorm(x, axis=-1, eps=1e-5):
    m = x.mean(dim=axis, keepdim=True)
    v = x.var(dim=axis, keepdim=True, unbiased=False)
    return (x - m) / torch.sqrt(v + eps)
def _scatter_add(tgt, idx, src, axis=0):
    return tgt.clone().index_add_(axis, idx, src)
def _segment_sum(src, seg, n):
    out = torch.zeros((n,) + src.shape[1:], dtype=src.dtype)
    return out.index_add_(0, seg, src)
def _pad(x, pw):
    flat = tuple(v for pair in reversed(pw) for v in pair)
    return torch.nn.functional.pad(x, flat)

kernel_name = 'parallel_sum__gqa_block_cached__dense_activation_gelu__decode'

def setup_inputs():

    _w = (lambda a: (lambda t: t.to(torch.bfloat16) if t.is_floating_point() else t)(torch.as_tensor(a)))
    def _A_setup():
        B, Sq, D = 2, 1, 512
        Hq, Hkv, Sk, Dh = 32, 8, 8192, 128
        assert Hq % Hkv == 0, (Hq, Hkv)
        return {
            "x": _w((lambda *s: torch.randn(*s, dtype=torch.bfloat16) * 0.05)(B, Sq, D)),
            "k_cache": _w((lambda *s: torch.randn(*s, dtype=torch.bfloat16) * 1.6)(B, Hkv, Sk, Dh)),
            "v_cache": _w((lambda *s: torch.randn(*s, dtype=torch.bfloat16) * 0.8)(B, Hkv, Sk, Dh)),
            "wq": _w((lambda *s: torch.randn(*s, dtype=torch.bfloat16) * 1.6)(D, Hq * Dh) * (D ** -0.5)),
            "wo": _w((lambda *s: torch.randn(*s, dtype=torch.bfloat16) * 0.8)(Hq * Dh, D) * ((Hq * Dh) ** -0.5)),
        }
    _A_in = _A_setup()

    def _B_setup():
        B, S, D, F = 2, 1, 512, 1792
        return {
            "x": _w((lambda *s: torch.randn(*s, dtype=torch.bfloat16) * 0.05)(B, S, D)),
            "w1": _w((lambda *s: torch.randn(*s, dtype=torch.bfloat16) * 0.4)(D, F) * (D ** -0.5)),
            "b1": _w((lambda *s: torch.randn(*s, dtype=torch.bfloat16) * 0.4)(F) * 0.01),
            "w2": _w((lambda *s: torch.randn(*s, dtype=torch.bfloat16) * 0.4)(F, D) * (F ** -0.5)),
            "b2": _w((lambda *s: torch.randn(*s, dtype=torch.bfloat16) * 0.4)(D) * 0.01),
        }
    _B_in = _B_setup()

    return {
        "A_x": _A_in["x"],
        "A_k_cache": _A_in["k_cache"],
        "A_v_cache": _A_in["v_cache"],
        "A_wq": _A_in["wq"],
        "A_wo": _A_in["wo"],
        "B_x": _B_in["x"],
        "B_w1": _B_in["w1"],
        "B_b1": _B_in["b1"],
        "B_w2": _B_in["w2"],
        "B_b2": _B_in["b2"],
    }

def reference(A_x, A_k_cache, A_v_cache, A_wq, A_wo, B_x, B_w1, B_b1, B_w2, B_b2):
    def _A_ref(x, k_cache, v_cache, wq, wo):
        B, Sq, D = x.shape
        Hq, Dh = 32, 128
        Hkv = k_cache.shape[1]
        rep = Hq // Hkv
        q = (lambda x, *d: x.permute(*d))((x @ wq).reshape(B, Sq, Hq, Dh), 0, 2, 1, 3)
        k = (lambda x, n, axis: torch.repeat_interleave(x, n, dim=axis))(k_cache, rep, axis=1)
        v = (lambda x, n, axis: torch.repeat_interleave(x, n, dim=axis))(v_cache, rep, axis=1)
        scores = torch.einsum("bhqd,bhkd->bhqk", q, k) * (Dh ** -0.5)
        p = _softmax(scores, axis=-1)
        o = torch.einsum("bhqk,bhkd->bhqd", p, v)
        return (lambda x, *d: x.permute(*d))(o, 0, 2, 1, 3).reshape(B, Sq, Hq * Dh) @ wo

    def _B_ref(x, w1, b1, w2, b2):
        h = torch.einsum("bsd,df->bsf", x, w1) + b1
        h = _gelu(h)
        return torch.einsum("bsf,fd->bsd", h, w2) + b2

    x = A_x
    xn = _layernorm(x, axis=-1)
    return x + _A_ref(xn, A_k_cache, A_v_cache, A_wq, A_wo) + _B_ref(xn, B_w1, B_b1, B_w2, B_b2)
```

```python
NAME = 'parallel_sum__gqa_block_cached__dense_activation_gelu__decode'
HEADER = """; Kernarg layout for this problem (104 bytes, ptrs only, base s[0:1]):
"""

class Asm:
    def __init__(self):
        self.lines = []
    def __call__(self, s=''):
        for l in s.split('\n'):
            self.lines.append('    ' + l.strip() if l.strip() and not l.strip().endswith(':') else l.strip())
    def label(self, l):
        self.lines.append(l + ':')
    def text(self):
        return '\n'.join(self.lines) + '\n'

def wrap(body, grid, block, lds, nvgpr=256, nsgpr=102, accum=None, name=NAME + '_kernel'):
    if accum is None:
        accum = min(256, (nvgpr + 3) // 4 * 4)
    s = HEADER
    s += f'; @launch grid=({grid},1,1) block=({block},1,1) lds={lds}\n'
    s += '.amdgcn_target "amdgcn-amd-amdhsa--gfx950"\n.text\n'
    s += f'.globl {name}\n.p2align 8\n.type {name},@function\n{name}:\n'
    s += body
    s += f'''    s_endpgm
.section .rodata,"a"
.p2align 6
.amdhsa_kernel {name}
  .amdhsa_next_free_vgpr {nvgpr}
  .amdhsa_next_free_sgpr {nsgpr}
  .amdhsa_accum_offset {accum}
  .amdhsa_group_segment_fixed_size 0
  .amdhsa_kernarg_size 104
  .amdhsa_user_sgpr_count 2
  .amdhsa_user_sgpr_kernarg_segment_ptr 1
  .amdhsa_system_sgpr_workgroup_id_x 1
.end_amdhsa_kernel
'''
    return s
```

```python
import sys, math, struct
from common import *

def f32bits(x): return struct.unpack('<I', struct.pack('<f', x))[0]

LDS_K = 0
LDS_WQ = 131072
LDS_W1 = 147456
LDS_XN0 = 155648
LDS_XN2 = 157696
LDS_Q = 159744
LDS_H = 160768
LDS_MX = 161280
LDS_LW = 161408
LDS_FL = 161536
LDS_TOTAL = 163840

WS_QS = 0
WS_SLOT = 0x100000
WS_PROF = 0x800000
SENT = 0xFFFFFFFF

CSCALE = (128 ** -0.5) * math.log2(math.e)

def gen(window=4, qk_after=8, prof=False):
    a = Asm()
    NT = ' nt'
    stamp_n = [0]
    def stamp(idx):
        if not prof: return
        a('s_memrealtime s[92:93]')
        a('s_waitcnt lgkmcnt(0)')
        a(f's_sub_u32 s92, s92, s96')
        a(f'v_writelane_b32 v167, s92, {idx}')
    def nop(n):
        a(f's_nop {n-1}')
    def allreduce_rows(op, v, t1, t2):
        a(f'v_mov_b32 {t1}, {v}')
        a(f'v_mov_b32 {t2}, {v}')
        nop(2)
        a(f'v_permlane16_swap_b32 {t1}, {t2}')
        nop(1)
        a(f'{op} {v}, {t1}, {t2}')
        a(f'v_mov_b32 {t1}, {v}')
        a(f'v_mov_b32 {t2}, {v}')
        nop(2)
        a(f'v_permlane32_swap_b32 {t1}, {t2}')
        nop(1)
        a(f'{op} {v}, {t1}, {t2}')
    def dpp(op, d, s0, s1, ctrl):
        a(f'{op}_dpp {d}, {s0}, {s1} {ctrl} row_mask:0xf bank_mask:0xf')
    def allreduce64_add(v, t1, t2):
        for r in (8, 4, 2, 1):
            nop(2)
            dpp('v_add_f32', v, v, v, f'row_ror:{r}')
        nop(1)
        allreduce_rows('v_add_f32', v, t1, t2)

    a('s_cmp_ge_u32 s2, 256')
    a('s_cbranch_scc1 L_end')
    a('s_load_dwordx16 s[4:19], s[0:1], 0')
    a('s_load_dwordx8 s[20:27], s[0:1], 64')
    a('s_load_dwordx2 s[28:29], s[0:1], 96')
    if prof:
        a('s_memrealtime s[96:97]')
        a('v_mov_b32 v167, 0')
    a('v_lshrrev_b32 v1, 6, v0')
    a('v_and_b32 v0, 63, v0')
    a('s_and_b32 s31, s2, 7')
    a('v_readfirstlane_b32 s30, v1')
    a('s_lshr_b32 s32, s2, 3')
    a('v_lshrrev_b32 v2, 4, v0')
    a('v_and_b32 v3, 15, v0')
    a('v_lshlrev_b32 v4, 4, v0')
    a('s_waitcnt lgkmcnt(0)')
    a('s_mov_b32 s36, s28\ns_mov_b32 s37, s29\ns_mov_b32 s38, 0x10000000\ns_mov_b32 s39, 0x20000')
    a(f's_lshl_b32 s33, s2, 13\ns_add_u32 s33, s33, {WS_SLOT}')
    a('s_cmp_ge_u32 s30, 8')
    a('s_cbranch_scc1 L_aux')

    VV = 8; X = 72; S = 104; P = 120; T = 128
    a('s_mov_b32 s40, s6\ns_mov_b32 s41, s7\ns_mov_b32 s42, 0x2000000\ns_mov_b32 s43, 0x20000')
    a('s_mov_b32 s44, s8\ns_mov_b32 s45, s9\ns_mov_b32 s46, 0x2000000\ns_mov_b32 s47, 0x20000')
    a('s_lshr_b32 s48, s32, 4\ns_lshl_b32 s48, s48, 3\ns_add_u32 s48, s48, s31\ns_lshl_b32 s48, s48, 4\ns_and_b32 s49, s32, 15\ns_add_u32 s48, s48, s49')
    a('s_lshl_b32 s48, s48, 17')
    a('s_lshl_b32 s49, s30, 14')
    a('s_add_u32 s48, s48, s49')
    a('v_lshlrev_b32 v5, 2, v2')
    a('v_lshlrev_b32 v6, 8, v2')
    for r in range(4):
        a(f'v_add_u32 v7, {r}, v5')
        a('v_xor_b32 v7, v7, v3')
        a(f'v_lshl_add_u32 v{140+r}, v7, 4, v6')
    seq = []
    for i in range(16): seq.append(('K', i))
    for i in range(16): seq.append(('V', i))
    issued = 0
    def issue(kind, i):
        nonlocal issued
        if issued >= window:
            a(f's_waitcnt vmcnt({window-1})')
        if kind == 'K':
            if i % 4 == 0:
                a(f's_add_u32 m0, s49, {i*1024}')
                a(f's_add_u32 s50, s48, {i*1024}')
            a(f'buffer_load_dwordx4 v{140+(i&3)}, s[40:43], s50 offen offset:{(i%4)*1024}{NT} lds')
        else:
            if i % 4 == 0:
                a(f's_add_u32 s50, s48, {i*1024}')
            a(f'buffer_load_dwordx4 v[{VV+4*i}:{VV+4*i+3}], v4, s[44:47], s50 offen offset:{(i%4)*1024}{NT}')
        issued += 1
    k = 0
    for _ in range(window):
        issue(*seq[k]); k += 1
    a('s_barrier')
    while k < 16 + qk_after:
        issue(*seq[k]); k += 1
    stamp(1)
    a(f'v_mov_b32 v5, {LDS_FL}')
    a.label('L_bq')
    a('ds_read_b32 v6, v5')
    a('s_waitcnt lgkmcnt(0)')
    a('v_readfirstlane_b32 s51, v6')
    a('s_cmp_eq_u32 s51, 0')
    a('s_cbranch_scc0 L_bq_done')
    a('s_sleep 2')
    a('s_branch L_bq')
    a.label('L_bq_done')
    stamp(2)
    a('v_lshrrev_b32 v5, 2, v3')
    a('v_lshlrev_b32 v5, 8, v5')
    a(f'v_lshl_add_u32 v5, v2, 4, v5')
    a(f'v_add_u32 v5, {LDS_Q}, v5')
    for j in range(4):
        a(f'ds_read_b128 v[{X+16+4*j}:{X+16+4*j+3}], v5 offset:{j*64}')
    a('v_and_b32 v5, 3, v3\nv_lshlrev_b32 v5, 2, v5\nv_lshrrev_b32 v6, 2, v3\nv_add_u32 v5, v5, v6\nv_lshlrev_b32 v5, 8, v5')
    a('v_add_u32 v5, s49, v5')
    for j in range(4):
        a(f'v_or_b32 v6, {4*j}, v2')
        a('v_xor_b32 v6, v6, v3')
        a(f'v_lshl_add_u32 v{144+j}, v6, 4, v5')
    nV = k - 16
    a(f's_waitcnt vmcnt({min(nV, window-1) if nV >= window else nV})')
    for t in range(4):
        for j in range(4):
            a(f'ds_read_b128 v[{X+4*j}:{X+4*j+3}], v{144+j} offset:{t*4096}')
        for j in range(4):
            a(f's_waitcnt lgkmcnt({3-j})')
            c = '0' if j == 0 else f'v[{S+4*t}:{S+4*t+3}]'
            a(f'v_mfma_f32_16x16x32_bf16 v[{S+4*t}:{S+4*t+3}], v[{X+4*j}:{X+4*j+3}], v[{X+16+4*j}:{X+16+4*j+3}], {c}')
    nop(8); nop(2)
    a(f'v_max3_f32 v5, v{S}, v{S+1}, v{S+2}')
    for i in range(3, 15, 2):
        a(f'v_max3_f32 v5, v5, v{S+i}, v{S+i+1}')
    a(f'v_max_f32 v5, v5, v{S+15}')
    allreduce_rows('v_max_f32', 'v5', 'v6', 'v7')
    a(f's_mov_b32 s52, {f32bits(CSCALE):#x}')
    a('v_mul_f32 v5, s52, v5')
    a('v_lshrrev_b32 v6, 2, v3')
    a('v_lshlrev_b32 v6, 5, v6')
    a(f's_lshl_b32 s53, s30, 2\ns_add_u32 s53, s53, {LDS_MX}')
    a('v_add_u32 v7, s53, v6')
    a('v_and_b32 v148, 0x33, v0')
    a('v_cmp_eq_u32 vcc, 0, v148')
    a('s_and_saveexec_b64 s[54:55], vcc')
    a('ds_write_b32 v7, v5')
    a('s_mov_b64 exec, s[54:55]')
    a('s_waitcnt lgkmcnt(0)')
    a(f'v_mov_b32 v149, {LDS_FL+8}\nv_mov_b32 v150, 1')
    a('v_cmp_eq_u32 vcc, 0, v0')
    a('s_and_saveexec_b64 s[54:55], vcc')
    a('ds_add_u32 v149, v150')
    a('s_mov_b64 exec, s[54:55]')
    a.label('L_bm')
    a('ds_read_b32 v150, v149')
    a('s_waitcnt lgkmcnt(0)')
    a('v_readfirstlane_b32 s51, v150')
    a('s_cmp_lt_u32 s51, 8')
    a('s_cbranch_scc0 L_bm_done')
    a('s_sleep 1')
    a('s_branch L_bm')
    a.label('L_bm_done')
    a(f'v_add_u32 v7, {LDS_MX}, v6')
    a(f'ds_read_b128 v[{X}:{X+3}], v7')
    a(f'ds_read_b128 v[{X+4}:{X+7}], v7 offset:16')
    a('s_waitcnt lgkmcnt(0)')
    a(f'v_max3_f32 v5, v{X}, v{X+1}, v{X+2}')
    a(f'v_max3_f32 v5, v5, v{X+3}, v{X+4}')
    a(f'v_max3_f32 v5, v5, v{X+5}, v{X+6}')
    a(f'v_max_f32 v151, v5, v{X+7}')
    for i in range(16):
        a(f'v_fma_f32 v{S+i}, v{S+i}, s52, -v151')
    for i in range(16):
        a(f'v_exp_f32 v{S+i}, v{S+i}')
    nop(1)
    a(f'v_add_f32 v152, v{S}, v{S+1}')
    for i in range(2, 16):
        a(f'v_add_f32 v152, v152, v{S+i}')
    for i in range(8):
        a(f'v_cvt_pk_bf16_f32 v{P+i}, v{S+2*i}, v{S+2*i+1}')
    allreduce_rows('v_add_f32', 'v152', 'v6', 'v7')
    stamp(3)
    while k < 32:
        issue(*seq[k]); k += 1
    stamp(4)
    a('s_mov_b32 s56, 0x05040100\ns_mov_b32 s57, 0x07060302')
    for TT in range(2):
        a(f's_waitcnt vmcnt({8 if TT == 0 else 0})')
        if TT == 1: stamp(5)
        for m in range(8):
            e, o = m >> 1, m & 1
            tb = T + 4 * (m & 1)
            sel = 's57' if o else 's56'
            for pr in range(4):
                lo = VV + 4 * (8 * TT + 2 * pr) + e
                hi = VV + 4 * (8 * TT + 2 * pr + 1) + e
                a(f'v_perm_b32 v{tb+pr}, v{hi}, v{lo}, {sel}')
            nop(2)
            c = '0' if TT == 0 else f'v[{X+4*m}:{X+4*m+3}]'
            a(f'v_mfma_f32_16x16x32_bf16 v[{X+4*m}:{X+4*m+3}], v[{P+4*TT}:{P+4*TT+3}], v[{tb}:{tb+3}], {c}')
    nop(8); nop(2)
    for m in range(8):
        a(f'v_mov_b32 v{S+m}, v{X+4*m}')
    a('v_lshlrev_b32 v5, 9, v2')
    a('v_lshl_add_u32 v5, v3, 5, v5')
    a('v_add_u32 v5, s49, v5')
    a(f'ds_write_b128 v5, v[{S}:{S+3}]')
    a(f'ds_write_b128 v5, v[{S+4}:{S+7}] offset:16')
    a('v_lshrrev_b32 v6, 2, v3\nv_lshlrev_b32 v6, 5, v6')
    a(f's_lshl_b32 s53, s30, 2\ns_add_u32 s53, s53, {LDS_LW}')
    a('v_add_u32 v7, s53, v6')
    a('v_cmp_eq_u32 vcc, 0, v148')
    a('s_and_saveexec_b64 s[54:55], vcc')
    a('ds_write_b32 v7, v152')
    a('s_mov_b64 exec, s[54:55]')
    a('s_waitcnt lgkmcnt(0)')
    a('s_barrier')
    stamp(6)
    a('s_lshl_b32 s53, s30, 8')
    a('v_lshlrev_b32 v5, 2, v0')
    a('v_add_u32 v5, s53, v5')
    a('v_add_u32 v6, 0x10000, v5')
    for w in range(4):
        a(f'ds_read_b32 v{X+w}, v5 offset:{w*16384}')
    for w in range(4):
        a(f'ds_read_b32 v{X+4+w}, v6 offset:{w*16384}')
    a('s_waitcnt lgkmcnt(0)')
    a(f'v_add_f32 v{X}, v{X}, v{X+1}\nv_add_f32 v{X+2}, v{X+2}, v{X+3}\nv_add_f32 v{X+4}, v{X+4}, v{X+5}\nv_add_f32 v{X+6}, v{X+6}, v{X+7}')
    a(f'v_add_f32 v{X}, v{X}, v{X+2}\nv_add_f32 v{X+4}, v{X+4}, v{X+6}')
    a(f'v_add_f32 v{X}, v{X}, v{X+4}')
    a(f'v_min_u32 v{X}, 0xfffffffe, v{X}')
    a(f'buffer_store_dword v{X}, v5, s[36:39], s33 offen sc1')
    a('s_cmp_eq_u32 s30, 0')
    a('s_cbranch_scc0 L_fin')
    a(f'v_add_u32 v7, {LDS_LW}, v6'.replace('v6', 'v153'))
    a.lines.pop()
    a('v_lshrrev_b32 v6, 2, v3\nv_lshlrev_b32 v7, 5, v6')
    a(f'v_add_u32 v7, {LDS_LW}, v7')
    a(f'ds_read_b128 v[{X+8}:{X+11}], v7')
    a(f'ds_read_b128 v[{X+12}:{X+15}], v7 offset:16')
    a('s_waitcnt lgkmcnt(0)')
    a(f'v_add_f32 v{X+8}, v{X+8}, v{X+9}\nv_add_f32 v{X+10}, v{X+10}, v{X+11}\nv_add_f32 v{X+12}, v{X+12}, v{X+13}\nv_add_f32 v{X+14}, v{X+14}, v{X+15}')
    a(f'v_add_f32 v{X+8}, v{X+8}, v{X+10}\nv_add_f32 v{X+12}, v{X+12}, v{X+14}')
    a(f'v_add_f32 v{X+9}, v{X+8}, v{X+12}')
    a(f'v_min_u32 v{X+8}, 0xfffffffe, v151')
    a(f'v_min_u32 v{X+9}, 0xfffffffe, v{X+9}')
    a('v_lshlrev_b32 v7, 3, v6')
    a('v_cmp_eq_u32 vcc, 0, v148')
    a('s_and_saveexec_b64 s[54:55], vcc')
    a(f'buffer_store_dwordx2 v[{X+8}:{X+9}], v7, s[36:39], s33 offen offset:2048 sc1')
    a('s_mov_b64 exec, s[54:55]')
    stamp(7)
    a('s_lshl_b32 s53, s31, 5\ns_add_u32 s53, s53, s32')
    a(f's_lshl_b32 s58, s53, 4\ns_add_u32 s58, s58, {WS_SLOT + 4096}')
    a('v_lshlrev_b32 v5, 13, v0')
    a('s_mov_b32 s60, s4\ns_mov_b32 s61, s5\ns_mov_b32 s62, 2048\ns_mov_b32 s63, 0x20000')
    a('s_mov_b32 s64, s22\ns_mov_b32 s65, s23\ns_mov_b32 s66, 1024\ns_mov_b32 s67, 0x20000')
    a('s_mov_b32 s68, s24\ns_mov_b32 s69, s25\ns_mov_b32 s70, 2048\ns_mov_b32 s71, 0x20000')
    a('s_lshl_b32 s59, s53, 3')
    a('s_and_b32 s72, s59, 1023')
    a('v_mov_b32 v6, 0')
    a(f'buffer_load_dwordx2 v[{S}:{S+1}], v6, s[60:63], s59 offen')
    a(f'buffer_load_dwordx2 v[{S+2}:{S+3}], v6, s[64:67], s72 offen')
    a.label('L_l2')
    for t in range(4):
        a(f's_add_u32 s73, s58, {t*64*8192}')
        a(f'buffer_load_dwordx4 v[{X+4*t}:{X+4*t+3}], v5, s[36:39], s73 offen sc1')
    a('s_waitcnt vmcnt(0)')
    a(f'v_max_u32 v7, v{X}, v{X+1}')
    for i in range(2, 16):
        a(f'v_max_u32 v7, v7, v{X+i}')
    a('v_cmp_eq_u32 vcc, -1, v7')
    a('s_cbranch_vccz L_l2_done')
    a('s_sleep 1')
    a('s_branch L_l2')
    a.label('L_l2_done')
    for i in range(4):
        a(f'v_add_f32 v{X+i}, v{X+i}, v{X+4+i}')
        a(f'v_add_f32 v{X+8+i}, v{X+8+i}, v{X+12+i}')
    for i in range(4):
        a(f'v_add_f32 v{X+i}, v{X+i}, v{X+8+i}')
    for r in (8, 4, 2, 1):
        nop(1)
        for i in range(4):
            dpp('v_add_f32', f'v{X+i}', f'v{X+i}', f'v{X+i}', f'row_ror:{r}')
    nop(1)
    for i in range(4):
        allreduce_rows('v_add_f32', f'v{X+i}', 'v6', 'v7')
    a(f'v_lshlrev_b32 v{X+4}, 16, v{S}\nv_and_b32 v{X+5}, 0xffff0000, v{S}\nv_lshlrev_b32 v{X+6}, 16, v{S+1}\nv_and_b32 v{X+7}, 0xffff0000, v{S+1}')
    a(f'v_lshlrev_b32 v{X+8}, 16, v{S+2}\nv_and_b32 v{X+9}, 0xffff0000, v{S+2}\nv_lshlrev_b32 v{X+10}, 16, v{S+3}\nv_and_b32 v{X+11}, 0xffff0000, v{S+3}')
    for i in range(4):
        a(f'v_add_f32 v{X+i}, v{X+i}, v{X+8+i}')
        a(f'v_add_f32 v{X+i}, v{X+i}, v{X+4+i}')
    a(f'v_cvt_pk_bf16_f32 v{X+4}, v{X}, v{X+1}')
    a(f'v_cvt_pk_bf16_f32 v{X+5}, v{X+2}, v{X+3}')
    a('v_mov_b32 v6, 0')
    a('v_cmp_eq_u32 vcc, 0, v0')
    a('s_and_saveexec_b64 s[54:55], vcc')
    a(f'buffer_store_dwordx2 v[{X+4}:{X+5}], v6, s[68:71], s59 offen')
    a('s_mov_b64 exec, s[54:55]')
    stamp(8)
    a('s_branch L_fin')

    a.label('L_aux')
    a('s_sub_u32 s30, s30, 8')
    a('s_setprio 3')
    a('s_mov_b32 s40, s4\ns_mov_b32 s41, s5\ns_mov_b32 s42, 2048\ns_mov_b32 s43, 0x20000')
    a('s_mov_b32 s44, s10\ns_mov_b32 s45, s11\ns_mov_b32 s46, 0x400000\ns_mov_b32 s47, 0x20000')
    a(f's_mov_b32 s48, s16\ns_mov_b32 s49, s17\ns_mov_b32 s50, {512*1792*2}\ns_mov_b32 s51, 0x20000')
    a('s_mov_b32 s52, s12\ns_mov_b32 s53, s13\ns_mov_b32 s54, 0x400000\ns_mov_b32 s55, 0x20000')
    a(f's_mov_b32 s56, s20\ns_mov_b32 s57, s21\ns_mov_b32 s58, {512*1792*2}\ns_mov_b32 s59, 0x20000')
    a('s_mov_b32 s60, s18\ns_mov_b32 s61, s19\ns_mov_b32 s62, 3584\ns_mov_b32 s63, 0x20000')
    a('s_mov_b32 s64, s26\ns_mov_b32 s65, s27\ns_mov_b32 s66, 256\ns_mov_b32 s67, 0x20000')
    a('s_mul_i32 s68, s31, 28\ns_add_u32 s68, s68, s32')
    a('s_cmp_eq_u32 s30, 0\ns_cbranch_scc1 L_a0')
    a('s_cmp_eq_u32 s30, 1\ns_cbranch_scc1 L_a1')
    a('s_cmp_eq_u32 s30, 2\ns_cbranch_scc1 L_a2')
    a(f'v_mov_b32 v5, {LDS_FL}\nv_lshl_add_u32 v5, v0, 2, v5\nv_mov_b32 v6, 0')
    a('v_cmp_gt_u32 vcc, 4, v0')
    a('s_and_saveexec_b64 s[70:71], vcc')
    a('ds_write_b32 v5, v6')
    a('s_mov_b64 exec, s[70:71]')
    a(f'v_mov_b32 v16, -1\nv_mov_b32 v17, -1\nv_mov_b32 v18, -1\nv_mov_b32 v19, -1')
    a('buffer_store_dwordx4 v[16:19], v4, s[36:39], s33 offen sc1')
    a('buffer_store_dwordx4 v[16:19], v4, s[36:39], s33 offen offset:1024 sc1')
    a('s_add_u32 s69, s33, 4096')
    for i in range(4):
        a(f'buffer_store_dwordx4 v[16:19], v4, s[36:39], s69 offen offset:{i*1024} sc1')
    a('v_cmp_gt_u32 vcc, 4, v0')
    a('s_and_saveexec_b64 s[70:71], vcc')
    a('buffer_store_dwordx4 v[16:19], v4, s[36:39], s33 offen offset:2048 sc1')
    a('v_lshrrev_b32 v5, 1, v0\nv_lshlrev_b32 v5, 13, v5\nv_and_b32 v6, 1, v0\nv_lshl_add_u32 v5, v6, 4, v5')
    a(f's_lshl_b32 s69, s31, 10\ns_lshl_b32 s72, s32, 5\ns_add_u32 s69, s69, s72\ns_add_u32 s69, s69, {WS_QS}')
    a('buffer_store_dwordx4 v[16:19], v5, s[36:39], s69 offen sc1')
    a('s_mov_b64 exec, s[70:71]')
    a('s_waitcnt lgkmcnt(0)')
    a('s_barrier')
    a('s_waitcnt vmcnt(0)')
    a('s_lshl_b32 s72, s31, 5\ns_add_u32 s72, s72, s32')
    a('v_mov_b32 v5, 1\nv_mov_b32 v6, 0')
    a('v_cmp_eq_u32 vcc, 0, v0')
    a('s_and_saveexec_b64 s[70:71], vcc')
    a('buffer_store_byte v5, v6, s[64:67], s72 offen sc1')
    a('s_mov_b64 exec, s[70:71]')
    a(f'v_mov_b32 v5, {LDS_FL+12}\nv_mov_b32 v6, 1')
    a('ds_write_b32 v5, v6')
    stamp(1)
    a('s_branch L_acommon')

    def layernorm():
        for b in range(2):
            src = 8 + 4 * b
            F = 16
            for i in range(4):
                a(f'v_lshlrev_b32 v{F+2*i}, 16, v{src+i}')
                a(f'v_and_b32 v{F+2*i+1}, 0xffff0000, v{src+i}')
            a(f'v_add_f32 v24, v{F}, v{F+1}')
            for i in range(2, 8):
                a(f'v_add_f32 v24, v24, v{F+i}')
            allreduce64_add('v24', 'v26', 'v27')
            a(f'v_mul_f32 v24, {f32bits(1.0/512):#x}, v24')
            a('v_mov_b32 v25, 0')
            for i in range(8):
                a(f'v_sub_f32 v26, v{F+i}, v24')
                a('v_fmac_f32 v25, v26, v26')
            allreduce64_add('v25', 'v26', 'v27')
            a(f'v_mul_f32 v25, {f32bits(1.0/512):#x}, v25')
            a('v_cvt_pk_bf16_f32 v26, v24, v25')
            a('v_lshlrev_b32 v24, 16, v26')
            a('v_and_b32 v25, 0xffff0000, v26')
            a(f'v_add_f32 v25, {f32bits(1e-5):#x}, v25')
            a('v_cvt_pk_bf16_f32 v25, v25, v25')
            a('v_and_b32 v25, 0xffff0000, v25')
            a('v_sqrt_f32 v25, v25')
            nop(1)
            a('v_cvt_pk_bf16_f32 v25, v25, v25')
            a('v_and_b32 v25, 0xffff0000, v25')
            a('v_rcp_f32 v28, v25')
            for i in range(8):
                a(f'v_sub_f32 v{F+i}, v{F+i}, v24')
            for i in range(4):
                a(f'v_cvt_pk_bf16_f32 v26, v{F+2*i}, v{F+2*i+1}')
                a(f'v_lshlrev_b32 v{F+2*i}, 16, v26')
                a(f'v_and_b32 v{F+2*i+1}, 0xffff0000, v26')
            for i in range(8):
                a(f'v_mul_f32 v26, v{F+i}, v28')
                a(f'v_fma_f32 v27, -v26, v25, v{F+i}')
                a(f'v_fma_f32 v{F+i}, v27, v28, v26')
            for i in range(4):
                a(f'v_cvt_pk_bf16_f32 v{src+i}, v{F+2*i}, v{F+2*i+1}')

    def proj(tile_addr_v, xn_base, step_stride, acc):
        half_off = step_stride // 8
        a('v_lshrrev_b32 v30, 3, v3')
        a('v_lshlrev_b32 v30, 10, v30')
        a('v_lshl_add_u32 v30, v2, 4, v30')
        a(f'v_add_u32 v30, {xn_base}, v30')
        for blk in range(4):
            for s in range(4):
                st = blk * 4 + s
                a(f'ds_read_b64_tr_b16 v[{32+4*s}:{33+4*s}], {tile_addr_v} offset:{st*step_stride}')
                a(f'ds_read_b64_tr_b16 v[{34+4*s}:{35+4*s}], {tile_addr_v} offset:{st*step_stride+half_off}')
                a(f'ds_read_b128 v[{48+4*s}:{51+4*s}], v30 offset:{st*64}')
            for s in range(4):
                st = blk * 4 + s
                a(f's_waitcnt lgkmcnt({3*(3-s)})')
                c = '0' if st == 0 else f'v[{acc}:{acc+3}]'
                a(f'v_mfma_f32_16x16x32_bf16 v[{acc}:{acc+3}], v[{32+4*s}:{35+4*s}], v[{48+4*s}:{51+4*s}], {c}')
        nop(8); nop(2)

    a.label('L_a0')
    a('buffer_load_dwordx4 v[8:11], v4, s[40:43], 0 offen')
    a('buffer_load_dwordx4 v[12:15], v4, s[40:43], 0 offen offset:1024')
    a('v_lshrrev_b32 v5, 1, v0\nv_lshlrev_b32 v5, 13, v5\nv_and_b32 v6, 1, v0\nv_lshl_add_u32 v5, v6, 4, v5')
    a('s_lshl_b32 s72, s31, 10\ns_lshl_b32 s73, s32, 5\ns_add_u32 s72, s72, s73')
    a(f's_add_u32 s69, s72, {WS_QS}')
    for i in range(16):
        a(f's_mov_b32 m0, {LDS_WQ + i*1024}')
        a(f'buffer_load_dwordx4 v5, s[44:47], s72 offen{NT} lds')
        if i < 15: a(f's_add_u32 s72, s72, {32*8192}')
    a('s_barrier')
    a('s_waitcnt vmcnt(16)')
    stamp(1)
    layernorm()
    a(f'v_add_u32 v5, {LDS_XN0}, v4')
    a('ds_write_b128 v5, v[8:11]')
    a('ds_write_b128 v5, v[12:15] offset:1024')
    a('s_waitcnt vmcnt(0) lgkmcnt(0)')
    stamp(2)
    a('v_lshrrev_b32 v5, 2, v3\nv_lshl_add_u32 v5, v2, 3, v5\nv_lshlrev_b32 v5, 5, v5\nv_and_b32 v6, 3, v3\nv_lshl_add_u32 v5, v6, 3, v5')
    a(f'v_add_u32 v5, {LDS_WQ}, v5')
    proj('v5', LDS_XN0, 32*32, 64)
    a('v_cvt_pk_bf16_f32 v68, v64, v65\nv_cvt_pk_bf16_f32 v69, v66, v67')
    a('v_min_u32 v68, 0xfffffffe, v68\nv_min_u32 v69, 0xfffffffe, v69')
    a('v_lshrrev_b32 v5, 3, v3\nv_lshlrev_b32 v5, 13, v5\nv_lshl_add_u32 v5, v2, 3, v5')
    a(f'v_mov_b32 v7, {LDS_FL+12}')
    a.label('L_a0_c')
    a('ds_read_b32 v6, v7')
    a('s_waitcnt lgkmcnt(0)')
    a('v_readfirstlane_b32 s75, v6')
    a('s_cmp_eq_u32 s75, 0')
    a('s_cbranch_scc1 L_a0_c')
    a('v_and_b32 v6, 7, v3')
    a('v_cmp_eq_u32 vcc, 0, v6')
    a('s_and_saveexec_b64 s[70:71], vcc')
    a('buffer_store_dwordx2 v[68:69], v5, s[36:39], s69 offen sc1')
    a('s_mov_b64 exec, s[70:71]')
    stamp(3)
    a('s_branch L_acommon')

    a.label('L_a1')
    a('s_barrier')
    a('v_lshlrev_b32 v5, 2, v0')
    a.label('L_a1_f')
    a('buffer_load_dword v6, v5, s[64:67], 0 offen sc1')
    a('s_waitcnt vmcnt(0)')
    a('v_cmp_ne_u32 vcc, 0x01010101, v6')
    a('s_cbranch_vccz L_a1_fd')
    a('s_branch L_a1_f')
    a.label('L_a1_fd')
    stamp(1)
    a(f's_lshr_b32 s72, s32, 4\ns_lshl_b32 s72, s72, 13\ns_lshl_b32 s73, s31, 10\ns_add_u32 s72, s72, s73\ns_add_u32 s72, s72, {WS_QS}')
    a.label('L_a1_q')
    a('buffer_load_dwordx4 v[8:11], v4, s[36:39], s72 offen sc1')
    a('s_waitcnt vmcnt(0)')
    a('v_max_u32 v6, v8, v9\nv_max_u32 v7, v10, v11\nv_max_u32 v6, v6, v7')
    a('v_cmp_eq_u32 vcc, -1, v6')
    a('s_cbranch_vccz L_a1_qd')
    a('s_branch L_a1_q')
    a.label('L_a1_qd')
    a(f'v_add_u32 v5, {LDS_Q}, v4')
    a('ds_write_b128 v5, v[8:11]')
    a('s_waitcnt lgkmcnt(0)')
    a(f'v_mov_b32 v5, {LDS_FL}\nv_mov_b32 v6, 1')
    a('ds_write_b32 v5, v6')
    stamp(2)
    a('s_branch L_acommon')

    a.label('L_a2')
    a('s_cmp_ge_u32 s32, 28')
    a('s_cbranch_scc1 L_a2_skip')
    a('buffer_load_dwordx4 v[8:11], v4, s[40:43], 0 offen')
    a('buffer_load_dwordx4 v[12:15], v4, s[40:43], 0 offen offset:1024')
    a('s_mov_b32 s72, 3584\nv_mul_lo_u32 v5, v0, s72')
    a('s_lshl_b32 s72, s68, 4')
    for i in range(8):
        a(f's_mov_b32 m0, {LDS_W1 + i*1024}')
        a(f'buffer_load_dwordx4 v5, s[48:51], s72 offen{NT} lds')
        if i < 7: a(f's_add_u32 s72, s72, {64*3584}')
    a('v_and_b32 v6, 1, v2\nv_lshlrev_b32 v6, 3, v6')
    a('s_lshl_b32 s72, s68, 4')
    a('buffer_load_dwordx2 v[70:71], v6, s[60:63], s72 offen')
    a('s_barrier')
    a('s_waitcnt vmcnt(9)')
    layernorm()
    a(f'v_add_u32 v5, {LDS_XN2}, v4')
    a('ds_write_b128 v5, v[8:11]')
    a('ds_write_b128 v5, v[12:15] offset:1024')
    a('s_waitcnt vmcnt(0) lgkmcnt(0)')
    a('v_lshrrev_b32 v5, 2, v3\nv_lshl_add_u32 v5, v2, 3, v5\nv_lshlrev_b32 v5, 4, v5\nv_and_b32 v6, 1, v3\nv_lshl_add_u32 v5, v6, 3, v5')
    a(f'v_add_u32 v5, {LDS_W1}, v5')
    proj('v5', LDS_XN2, 32*16, 64)
    a('v_cvt_pk_bf16_f32 v68, v64, v65\nv_cvt_pk_bf16_f32 v69, v66, v67')
    a('v_lshlrev_b32 v64, 16, v68\nv_and_b32 v65, 0xffff0000, v68\nv_lshlrev_b32 v66, 16, v69\nv_and_b32 v67, 0xffff0000, v69')
    a('v_lshlrev_b32 v72, 16, v70\nv_and_b32 v73, 0xffff0000, v70\nv_lshlrev_b32 v74, 16, v71\nv_and_b32 v75, 0xffff0000, v71')
    for i in range(4):
        a(f'v_add_f32 v{64+i}, v{64+i}, v{72+i}')
    a('v_cvt_pk_bf16_f32 v68, v64, v65\nv_cvt_pk_bf16_f32 v69, v66, v67')
    a('v_lshlrev_b32 v64, 16, v68\nv_and_b32 v65, 0xffff0000, v68\nv_lshlrev_b32 v66, 16, v69\nv_and_b32 v67, 0xffff0000, v69')
    kk = -2.0 * math.sqrt(2.0 / math.pi) * math.log2(math.e)
    a(f's_mov_b32 s72, {f32bits(0.044715):#x}\ns_mov_b32 s73, {f32bits(kk):#x}')
    for i in range(4):
        x = f'v{64+i}'; t = f'v{72+i}'
        a(f'v_mul_f32 {t}, {x}, {x}')
        a(f'v_mul_f32 {t}, {t}, {x}')
        a(f'v_fma_f32 {t}, {t}, s72, {x}')
        a(f'v_mul_f32 {t}, s73, {t}')
        a(f'v_exp_f32 {t}, {t}')
        nop(1)
        a(f'v_add_f32 {t}, 1.0, {t}')
        a(f'v_rcp_f32 {t}, {t}')
        nop(1)
        a(f'v_mul_f32 {x}, {x}, {t}')
    a('v_cvt_pk_bf16_f32 v68, v64, v65\nv_cvt_pk_bf16_f32 v69, v66, v67')
    a('v_cmp_gt_u32 vcc, 2, v2')
    nop(2)
    a('v_cndmask_b32 v68, 0, v68, vcc\nv_cndmask_b32 v69, 0, v69, vcc')
    a(f'v_lshlrev_b32 v5, 3, v0\nv_add_u32 v5, {LDS_H}, v5')
    a('ds_write_b64 v5, v[68:69]')
    a('s_waitcnt lgkmcnt(0)')
    a(f'v_mov_b32 v5, {LDS_FL+4}\nv_mov_b32 v6, 1')
    a('ds_write_b32 v5, v6')
    a('s_branch L_acommon')
    a.label('L_a2_skip')
    a('s_barrier')

    a.label('L_acommon')
    LO = 76; L2 = 92; TO = 108; T2 = 124; ACC = 8
    a('v_lshlrev_b32 v5, 12, v2\nv_lshl_add_u32 v5, v3, 4, v5')
    a('s_lshl_b32 s72, s31, 9\ns_lshl_b32 s73, s32, 4\ns_add_u32 s72, s72, s73\ns_lshl_b32 s72, s72, 10')
    a('s_lshl_b32 s73, s30, 8\ns_add_u32 s72, s72, s73')
    for i in range(4):
        a(f'buffer_load_dwordx4 v[{LO+4*i}:{LO+4*i+3}], v5, s[52:55], s72 offen offset:{i*1024}{NT}')
    a('s_mov_b32 s76, 0x05040100\ns_mov_b32 s77, 0x07060302')
    a('s_cmp_ge_u32 s32, 28')
    a('s_cbranch_scc1 L_nomlp')
    a('v_and_b32 v6, 1, v2\nv_lshlrev_b32 v6, 12, v6\nv_lshl_add_u32 v6, v3, 4, v6')
    a('s_lshl_b32 s74, s68, 13\ns_add_u32 s74, s74, s73')
    for i in range(4):
        a(f'buffer_load_dwordx4 v[{L2+4*i}:{L2+4*i+3}], v6, s[56:59], s74 offen offset:{i*1024}{NT}')
    a(f'v_mov_b32 v5, {LDS_FL+4}')
    a.label('L_ah')
    a('ds_read_b32 v6, v5')
    a('s_waitcnt lgkmcnt(0)')
    a('v_readfirstlane_b32 s75, v6')
    a('s_cmp_eq_u32 s75, 0')
    a('s_cbranch_scc0 L_ah_done')
    a('s_sleep 4')
    a('s_branch L_ah')
    a.label('L_ah_done')
    a(f'v_lshlrev_b32 v5, 3, v0\nv_add_u32 v5, {LDS_H}, v5')
    a('ds_read_b64 v[40:41], v5')
    a('s_waitcnt vmcnt(0) lgkmcnt(0)')
    for m in range(8):
        e, o = m >> 1, m & 1
        sel = 's77' if o else 's76'
        a(f'v_perm_b32 v{T2+2*m}, v{L2+4+e}, v{L2+e}, {sel}')
        a(f'v_perm_b32 v{T2+2*m+1}, v{L2+12+e}, v{L2+8+e}, {sel}')
    nop(2)
    for m in range(8):
        a(f'v_mfma_f32_16x16x16_bf16 v[{ACC+4*m}:{ACC+4*m+3}], v[40:41], v[{T2+2*m}:{T2+2*m+1}], 0')
    a('s_branch L_mlpdone')
    a.label('L_nomlp')
    for i in range(32):
        a(f'v_mov_b32 v{ACC+i}, 0')
    a('s_waitcnt vmcnt(0)')
    a.label('L_mlpdone')
    for m in range(8):
        e, o = m >> 1, m & 1
        sel = 's77' if o else 's76'
        a(f'v_perm_b32 v{TO+2*m}, v{LO+4+e}, v{LO+e}, {sel}')
        a(f'v_perm_b32 v{TO+2*m+1}, v{LO+12+e}, v{LO+8+e}, {sel}')
    a('v_lshrrev_b32 v5, 3, v3\nv_lshlrev_b32 v5, 4, v5\nv_and_b32 v6, 7, v3\nv_add_u32 v5, v5, v6')
    a('v_lshlrev_b32 v5, 16, v5')
    a('v_lshl_add_u32 v42, v2, 4, v5')
    a('v_mov_b32 v43, v5')
    a(f's_lshl_b32 s72, s31, 13\ns_add_u32 s72, s72, {WS_SLOT}')
    a('s_lshr_b32 s73, s32, 3')
    a('s_lshl_b32 s74, s73, 9\ns_and_b32 s75, s32, 7\ns_lshl_b32 s75, s75, 6\ns_add_u32 s74, s74, s75\ns_add_u32 s74, s74, s72')
    a('s_lshl_b32 s75, s73, 3\ns_add_u32 s75, s75, s72\ns_add_u32 s75, s75, 2048')
    a(f's_add_u32 s78, s74, {8*8*8192}\ns_add_u32 s79, s75, {8*8*8192}')
    stamp(4)
    a('s_barrier')
    stamp(5)
    a.label('L_l1')
    a('buffer_load_dwordx4 v[44:47], v42, s[36:39], s74 offen sc1')
    a('buffer_load_dwordx4 v[48:51], v42, s[36:39], s78 offen sc1')
    a('buffer_load_dwordx2 v[52:53], v43, s[36:39], s75 offen sc1')
    a('buffer_load_dwordx2 v[54:55], v43, s[36:39], s79 offen sc1')
    a('s_waitcnt vmcnt(0)')
    a('v_max_u32 v6, v44, v45')
    for i in range(46, 56):
        a(f'v_max_u32 v6, v6, v{i}')
    a('v_cmp_eq_u32 vcc, -1, v6')
    a('s_cbranch_vccz L_l1_done')
    a('s_branch L_l1')
    a.label('L_l1_done')
    stamp(6)
    R8 = ['quad_perm:[1,0,3,2]', 'quad_perm:[2,3,0,1]', 'row_half_mirror']
    a('v_max_f32 v56, v52, v54')
    for ctl in R8:
        nop(2)
        dpp('v_max_f32', 'v56', 'v56', 'v56', ctl)
    a('v_sub_f32 v52, v52, v56\nv_sub_f32 v54, v54, v56')
    a('v_exp_f32 v52, v52\nv_exp_f32 v54, v54')
    nop(1)
    a('v_mul_f32 v57, v52, v53')
    a('v_fmac_f32 v57, v54, v55')
    for i in range(4):
        a(f'v_mul_f32 v{44+i}, v{44+i}, v52')
        a(f'v_fmac_f32 v{44+i}, v{48+i}, v54')
    for ctl in R8:
        nop(1)
        dpp('v_add_f32', 'v57', 'v57', 'v57', ctl)
        for i in range(4):
            dpp('v_add_f32', f'v{44+i}', f'v{44+i}', f'v{44+i}', ctl)
    nop(1)
    a('v_rcp_f32 v57, v57')
    nop(1)
    for i in range(4):
        a(f'v_mul_f32 v{44+i}, v{44+i}, v57')
    a('v_cvt_pk_bf16_f32 v58, v44, v45\nv_cvt_pk_bf16_f32 v59, v46, v47')
    nop(2)
    for m in range(8):
        a(f'v_mfma_f32_16x16x16_bf16 v[{ACC+4*m}:{ACC+4*m+3}], v[58:59], v[{TO+2*m}:{TO+2*m+1}], v[{ACC+4*m}:{ACC+4*m+3}]')
    a('v_and_b32 v6, 1, v2')
    a('v_cmp_eq_u32 vcc, 1, v6')
    nop(8)
    for i in range(4):
        a(f'v_cndmask_b32 v{44+i}, v{ACC+4*i}, v{ACC+4*(i+4)}, vcc')
    for i in range(4):
        a(f'v_min_u32 v{44+i}, 0xfffffffe, v{44+i}')
    a('v_lshrrev_b32 v5, 1, v2\nv_lshlrev_b32 v5, 11, v5\nv_lshl_add_u32 v5, v3, 5, v5\nv_lshl_add_u32 v5, v6, 4, v5')
    a('s_lshl_b32 s72, s30, 9\ns_add_u32 s72, s72, s33\ns_add_u32 s72, s72, 4096')
    a('buffer_store_dwordx4 v[44:47], v5, s[36:39], s72 offen sc1')
    stamp(7)
    a('s_add_u32 s30, s30, 8')
    a.label('L_fin')
    if prof:
        a(f's_lshl_b32 s92, s2, 4\ns_add_u32 s92, s92, s30\ns_lshl_b32 s92, s92, 8\ns_add_u32 s92, s92, {WS_PROF}')
        a('v_writelane_b32 v167, s96, 0')
        a('v_lshlrev_b32 v5, 2, v0')
        a('buffer_store_dword v167, v5, s[36:39], s92 offen')
    a.label('L_end')
    return wrap(a.text(), 256, 768, LDS_TOTAL, nvgpr=168, accum=168)

if __name__ == '__main__':
    open('k1.s', 'w').write(gen())
    open('k1p.s', 'w').write(gen(prof=True))
```

```python
import sys, math, struct
from common import *

def f32bits(x): return struct.unpack('<I', struct.pack('<f', x))[0]

LDS_K = 0
LDS_WQ = 131072
LDS_W1 = 147456
LDS_XN0 = 155648
LDS_XN2 = 157696
LDS_Q = 159744
LDS_H = 160768
LDS_MX = 161280
LDS_LW = 161408
LDS_FL = 161536
LDS_OA = 161792
LDS_L2 = 162304
LDS_TOTAL = 163840

WS_EPOCH = 0x40000
WS_QS = 0
WS_SLOT = 0x100000
WS_Y = 0x200000
WS_XT = 0x20000
WS_HP = 0x50000
WS_QP = 0x80000
WS_PROF = 0x800000

CSCALE = (128 ** -0.5) * math.log2(math.e)

def gen(window=4, nthr=16, prof=False, sleep_q=4, sleep_l1=1, sleep_l2=1, stopP=False, noswz=False, noq=False, now='', rot=0):
    a = Asm()
    NT = ' nt'
    def stamp(idx):
        if not prof: return
        a('s_memrealtime s[92:93]')
        a('s_waitcnt lgkmcnt(0)')
        a(f's_sub_u32 s92, s92, s96')
        a(f'v_writelane_b32 v167, s92, {idx}')
    def nop(n):
        a(f's_nop {n-1}')
    def allreduce_rows(op, v, t1, t2):
        a(f'v_mov_b32 {t1}, {v}')
        a(f'v_mov_b32 {t2}, {v}')
        nop(2)
        a(f'v_permlane16_swap_b32 {t1}, {t2}')
        nop(1)
        a(f'{op} {v}, {t1}, {t2}')
        a(f'v_mov_b32 {t1}, {v}')
        a(f'v_mov_b32 {t2}, {v}')
        nop(2)
        a(f'v_permlane32_swap_b32 {t1}, {t2}')
        nop(1)
        a(f'{op} {v}, {t1}, {t2}')
    def dpp(op, d, s0, s1, ctrl):
        a(f'{op}_dpp {d}, {s0}, {s1} {ctrl} row_mask:0xf bank_mask:0xf')
    def allreduce64_add(v, t1, t2):
        for r in (8, 4, 2, 1):
            nop(2)
            dpp('v_add_f32', v, v, v, f'row_ror:{r}')
        nop(1)
        allreduce_rows('v_add_f32', v, t1, t2)
    def lds_wait(flag_off, label, tmpa, tmpd, sreg, sleep, cmp='ne0', val=0):
        a(f'v_mov_b32 {tmpa}, {LDS_FL+flag_off}')
        a.label(label)
        a(f'ds_read_b32 {tmpd}, {tmpa}')
        a('s_waitcnt lgkmcnt(0)')
        a(f'v_readfirstlane_b32 {sreg}, {tmpd}')
        if cmp == 'ne0':
            a(f's_cmp_eq_u32 {sreg}, 0')
            a(f's_cbranch_scc0 {label}_d')
        else:
            a(f's_cmp_lt_u32 {sreg}, {val}')
            a(f's_cbranch_scc0 {label}_d')
        if sleep: a(f's_sleep {sleep}')
        a(f's_branch {label}')
        a.label(label + '_d')
    def lds_set(flag_off, tmpa, tmpd):
        a(f'v_mov_b32 {tmpa}, {LDS_FL+flag_off}\nv_mov_b32 {tmpd}, 1')
        a(f'ds_write_b32 {tmpa}, {tmpd}')
    TF = ['s84', 's85', 's86', 's87']

    a('s_cmp_ge_u32 s2, 256')
    a('s_cbranch_scc1 L_end')
    a('s_load_dwordx16 s[4:19], s[0:1], 0')
    a('s_load_dwordx8 s[20:27], s[0:1], 64')
    a('s_load_dwordx2 s[28:29], s[0:1], 96')
    if prof:
        a('s_memrealtime s[96:97]')
        a('v_mov_b32 v167, 0')
    a('v_lshrrev_b32 v1, 6, v0')
    a('v_and_b32 v0, 63, v0')
    a(f's_add_u32 s31, s2, {rot}')
    a('s_and_b32 s31, s31, 7')
    a('v_readfirstlane_b32 s30, v1')
    a('s_lshr_b32 s32, s2, 3')
    a('v_lshrrev_b32 v2, 4, v0')
    a('v_and_b32 v3, 15, v0')
    a('v_lshlrev_b32 v4, 4, v0')
    a('s_waitcnt lgkmcnt(0)')
    a('s_mov_b32 s36, s28\ns_mov_b32 s37, s29\ns_mov_b32 s38, 0x10000000\ns_mov_b32 s39, 0x20000')
    a('s_lshr_b32 s88, s31, 2')
    a('s_lshl_b32 s89, s31, 1\ns_lshr_b32 s90, s32, 4\ns_add_u32 s89, s89, s90\ns_and_b32 s89, s89, 7')
    a('s_and_b32 s90, s32, 15')
    a('s_add_u32 s35, s31, 1\ns_and_b32 s35, s35, 3\ns_lshl_b32 s35, s35, 1\ns_lshr_b32 s34, s31, 2\ns_add_u32 s35, s35, s34')
    a(f's_lshl_b32 s33, s89, 17\ns_lshl_b32 s34, s88, 11\ns_add_u32 s33, s33, s34\ns_add_u32 s33, s33, {WS_SLOT}')
    def load_epoch():
        a(f's_load_dwordx2 s[80:81], s[28:29], {WS_EPOCH}')
    def mk_tags():
        a('s_waitcnt lgkmcnt(0)')
        a('s_add_u32 s82, s80, 1\ns_addc_u32 s83, s81, 0')
        a('s_and_b32 s84, s82, 0xfff')
        a('s_bfe_u32 s85, s82, 0xc000c')
        a('s_lshr_b32 s86, s82, 24\ns_lshl_b32 s87, s83, 8\ns_or_b32 s86, s86, s87\ns_and_b32 s86, s86, 0xfff')
        a('s_bfe_u32 s87, s83, 0xc0004')
    a('s_cmp_ge_u32 s30, 8')
    a('s_cbranch_scc1 L_aux')

    VV = 8; X = 72; S = 104; P = 120; T = 128
    a('s_mov_b32 s40, s6\ns_mov_b32 s41, s7\ns_mov_b32 s42, 0x2000000\ns_mov_b32 s43, 0x20000')
    a('s_mov_b32 s44, s8\ns_mov_b32 s45, s9\ns_mov_b32 s46, 0x2000000\ns_mov_b32 s47, 0x20000')
    a('s_lshl_b32 s48, s31, 5\ns_add_u32 s48, s48, s32\ns_lshl_b32 s48, s48, 17')
    a('s_lshl_b32 s49, s30, 10')
    a('s_add_u32 s48, s48, s49')
    a('s_lshl_b32 s49, s30, 14')
    a('v_lshlrev_b32 v5, 2, v2')
    a('v_lshlrev_b32 v6, 8, v2')
    for r in range(4):
        a(f'v_add_u32 v7, {r}, v5')
        a('v_xor_b32 v7, v7, v3' if not noswz else 'v_mov_b32 v7, v3')
        a(f'v_lshl_add_u32 v{140+r}, v7, 4, v6')
    seq = [('K', i) for i in range(16)] + [('V', i) for i in range(16)]
    issued = 0
    def issue(kind, i):
        nonlocal issued
        if issued >= window and issued < nthr:
            a(f's_waitcnt vmcnt({window-1})')
        if kind == 'K':
            a(f's_add_u32 m0, s49, {i*1024}')
            a(f's_add_u32 s50, s48, {i*8192}')
            a(f'buffer_load_dwordx4 v{140+(i&3)}, s[40:43], s50 offen{NT} lds')
        else:
            a(f's_add_u32 s50, s48, {i*8192}')
            a(f'buffer_load_dwordx4 v[{VV+4*i}:{VV+4*i+3}], v4, s[44:47], s50 offen{NT}')
        issued += 1
    a('s_barrier')
    k = 0
    load_epoch()
    while k < 8:
        issue(*seq[k]); k += 1
    mk_tags()
    while k < 32:
        issue(*seq[k]); k += 1
    stamp(1)
    lds_wait(0, 'L_bq', 'v5', 'v6', 's51', 2)
    stamp(2)
    a('v_lshrrev_b32 v5, 2, v3')
    a('v_lshlrev_b32 v5, 8, v5')
    a(f'v_lshl_add_u32 v5, v2, 4, v5')
    a(f'v_add_u32 v5, {LDS_Q}, v5')
    for j in range(4):
        a(f'ds_read_b128 v[{X+16+4*j}:{X+16+4*j+3}], v5 offset:{j*64}')
    a('v_and_b32 v5, 3, v3\nv_lshlrev_b32 v5, 2, v5\nv_lshrrev_b32 v6, 2, v3\nv_add_u32 v5, v5, v6\nv_lshlrev_b32 v5, 8, v5')
    a('v_add_u32 v5, s49, v5')
    for j in range(4):
        a(f'v_or_b32 v6, {4*j}, v2')
        a('v_xor_b32 v6, v6, v3')
        a(f'v_lshl_add_u32 v{144+j}, v6, 4, v5')
    a('s_waitcnt vmcnt(16)')
    for t in range(4):
        for j in range(4):
            a(f'ds_read_b128 v[{X+4*j}:{X+4*j+3}], v{144+j} offset:{t*4096}')
        for j in range(4):
            a(f's_waitcnt lgkmcnt({3-j})')
            c = '0' if j == 0 else f'v[{S+4*t}:{S+4*t+3}]'
            a(f'v_mfma_f32_16x16x32_bf16 v[{S+4*t}:{S+4*t+3}], v[{X+4*j}:{X+4*j+3}], v[{X+16+4*j}:{X+16+4*j+3}], {c}')
    nop(8); nop(2)
    a(f'v_max3_f32 v5, v{S}, v{S+1}, v{S+2}')
    for i in range(3, 15, 2):
        a(f'v_max3_f32 v5, v5, v{S+i}, v{S+i+1}')
    a(f'v_max_f32 v5, v5, v{S+15}')
    allreduce_rows('v_max_f32', 'v5', 'v6', 'v7')
    a(f's_mov_b32 s52, {f32bits(CSCALE):#x}')
    a('v_mul_f32 v151, s52, v5')
    a('v_lshrrev_b32 v6, 2, v3')
    a('v_lshlrev_b32 v6, 5, v6')
    a(f's_lshl_b32 s53, s30, 2\ns_add_u32 s53, s53, {LDS_MX}')
    a('v_add_u32 v7, s53, v6')
    a('v_and_b32 v148, 0x33, v0')
    a('v_cmp_eq_u32 vcc, 0, v148')
    a('s_and_saveexec_b64 s[54:55], vcc')
    a('ds_write_b32 v7, v151')
    a('s_mov_b64 exec, s[54:55]')
    a(f'v_mov_b32 v149, {LDS_FL+8}\nv_mov_b32 v150, 1')
    a('v_cmp_eq_u32 vcc, 0, v0')
    a('s_and_saveexec_b64 s[54:55], vcc')
    a('ds_add_u32 v149, v150')
    a('s_mov_b64 exec, s[54:55]')
    for i in range(16):
        a(f'v_fma_f32 v{S+i}, v{S+i}, s52, -v151')
    for i in range(16):
        a(f'v_exp_f32 v{S+i}, v{S+i}')
    nop(1)
    a(f'v_add_f32 v152, v{S}, v{S+1}')
    for i in range(2, 16):
        a(f'v_add_f32 v152, v152, v{S+i}')
    for i in range(8):
        a(f'v_cvt_pk_bf16_f32 v{P+i}, v{S+2*i}, v{S+2*i+1}')
    allreduce_rows('v_add_f32', 'v152', 'v6', 'v7')
    stamp(3)
    a('s_mov_b32 s56, 0x05040100\ns_mov_b32 s57, 0x07060302')
    a('v_mov_b32 v153, 0xfffff000')
    a('v_lshlrev_b32 v5, 9, v2')
    a('v_lshl_add_u32 v5, v3, 5, v5')
    a('v_add_u32 v154, s49, v5')
    a('s_waitcnt vmcnt(8)')
    for m in range(8):
        e, o = m >> 1, m & 1
        tb = T + 4 * (m & 1)
        sel = 's57' if o else 's56'
        for pr in range(4):
            lo = VV + 4 * (2 * pr) + e
            hi = VV + 4 * (2 * pr + 1) + e
            a(f'v_perm_b32 v{tb+pr}, v{hi}, v{lo}, {sel}')
        nop(2)
        a(f'v_mfma_f32_16x16x32_bf16 v[{X+4*m}:{X+4*m+3}], v[{P}:{P+3}], v[{tb}:{tb+3}], 0')
    lds_wait(8, 'L_bm', 'v149', 'v150', 's51', 1, cmp='lt', val=8)
    a('v_lshrrev_b32 v6, 2, v3\nv_lshlrev_b32 v6, 5, v6')
    a(f'v_add_u32 v7, {LDS_MX}, v6')
    a(f'ds_read_b128 v[{S}:{S+3}], v7')
    a(f'ds_read_b128 v[{S+4}:{S+7}], v7 offset:16')
    a('s_waitcnt lgkmcnt(0)')
    a(f'v_max3_f32 v5, v{S}, v{S+1}, v{S+2}')
    a(f'v_max3_f32 v5, v5, v{S+3}, v{S+4}')
    a(f'v_max3_f32 v5, v5, v{S+5}, v{S+6}')
    a(f'v_max_f32 v5, v5, v{S+7}')
    a('v_and_b32 v5, 0xfffff000, v5')
    a('v_sub_f32 v155, v151, v5')
    a('v_exp_f32 v155, v155')
    a(f'v_mul_f32 v{T}, 0.125, v5'.replace('0.125', '0x3e000000'))
    a(f'v_mov_b32 v{T+2}, 0\nv_mov_b32 v{T+3}, 0')
    a(f'v_mul_f32 v{T+1}, v152, v155')
    a('v_lshrrev_b32 v6, 2, v3\nv_lshlrev_b32 v6, 4, v6')
    a('s_add_u32 s53, s49, 2048')
    a('v_add_u32 v7, s53, v6')
    a('v_cmp_eq_u32 vcc, 0, v148')
    a('s_and_saveexec_b64 s[54:55], vcc')
    a(f'ds_write_b128 v7, v[{T}:{T+3}]')
    a('s_mov_b64 exec, s[54:55]')
    a(f'v_lshlrev_b32 v7, 5, v2\nv_add_u32 v7, {LDS_MX}, v7')
    a('s_lshl_b32 s53, s30, 2')
    a('v_add_u32 v6, s53, v7')
    a(f'ds_read_b128 v[{S}:{S+3}], v7')
    a(f'ds_read_b128 v[{S+4}:{S+7}], v7 offset:16')
    a(f'ds_read_b32 v155, v6')
    a('s_waitcnt lgkmcnt(0)')
    a(f'v_max3_f32 v5, v{S}, v{S+1}, v{S+2}')
    a(f'v_max3_f32 v5, v5, v{S+3}, v{S+4}')
    a(f'v_max3_f32 v5, v5, v{S+5}, v{S+6}')
    a(f'v_max_f32 v5, v5, v{S+7}')
    a('v_and_b32 v5, 0xfffff000, v5')
    a('v_sub_f32 v155, v155, v5')
    a('v_exp_f32 v155, v155')
    a('v_lshrrev_b32 v5, 3, v0')
    a('s_lshl_b32 s53, s30, 3')
    a('v_add_u32 v5, s53, v5')
    a('v_and_b32 v6, 7, v0')
    a('v_lshlrev_b32 v7, 6, v5\nv_lshl_add_u32 v7, v6, 4, v7')
    a('s_lshl_b32 s53, s30, 4\ns_add_u32 s53, s53, 2048')
    a('v_mov_b32 v156, s53')
    a('v_cmp_gt_u32 vcc, 4, v6')
    a('v_add_u32 v157, s90, v5\nv_and_b32 v157, 15, v157\nv_lshlrev_b32 v157, 7, v157')
    a('v_cndmask_b32 v156, v156, v7, vcc')
    a('v_lshl_add_u32 v157, v5, 12, v157\nv_lshl_add_u32 v157, v6, 4, v157')
    stamp(4)
    for pr in range(4):
        a(f's_waitcnt vmcnt({6-2*pr})')
        if pr == 3: stamp(5)
        order = list(range(8))
        for m in order:
            e, o = m >> 1, m & 1
            sel = 's57' if o else 's56'
            lo = VV + 4 * (8 + 2 * pr) + e
            hi = VV + 4 * (8 + 2 * pr + 1) + e
            a(f'v_perm_b32 v{VV+4*m+pr}, v{hi}, v{lo}, {sel}')
            if pr == 3 and m >= 2:
                mm = m - 2
                a(f'v_mfma_f32_16x16x32_bf16 v[{X+4*mm}:{X+4*mm+3}], v[{P+4}:{P+7}], v[{VV+4*mm}:{VV+4*mm+3}], v[{X+4*mm}:{X+4*mm+3}]')
    nop(1)
    for mm in (6, 7):
        a(f'v_mfma_f32_16x16x32_bf16 v[{X+4*mm}:{X+4*mm+3}], v[{P+4}:{P+7}], v[{VV+4*mm}:{VV+4*mm+3}], v[{X+4*mm}:{X+4*mm+3}]')
    nop(4)
    for m in range(8):
        a(f'v_mul_f32 v{S+m}, v{X+4*m}, v155')
        if m == 5: nop(4)
    a(f'ds_write_b128 v154, v[{S}:{S+3}]')
    a(f'ds_write_b128 v154, v[{S+4}:{S+7}] offset:16')
    a('s_waitcnt lgkmcnt(0)')
    a('s_barrier')
    stamp(6)
    a('s_cmp_ge_u32 s30, 4')
    a('s_cbranch_scc1 L_bpub_done')
    a('v_add_u32 v6, 0x10000, v156')
    for w in range(4):
        a(f'ds_read_b128 v[{X+4*w}:{X+4*w+3}], v156 offset:{w*16384}')
    for w in range(4):
        a(f'ds_read_b128 v[{X+16+4*w}:{X+16+4*w+3}], v6 offset:{w*16384}')
    a('s_waitcnt lgkmcnt(4)')
    for i in range(0, 4, 2):
        a(f'v_pk_add_f32 v[{X+i}:{X+i+1}], v[{X+i}:{X+i+1}], v[{X+4+i}:{X+4+i+1}]')
        a(f'v_pk_add_f32 v[{X+8+i}:{X+8+i+1}], v[{X+8+i}:{X+8+i+1}], v[{X+12+i}:{X+12+i+1}]')
    a('s_waitcnt lgkmcnt(0)')
    for i in range(0, 4, 2):
        a(f'v_pk_add_f32 v[{X+16+i}:{X+16+i+1}], v[{X+16+i}:{X+16+i+1}], v[{X+20+i}:{X+20+i+1}]')
        a(f'v_pk_add_f32 v[{X+24+i}:{X+24+i+1}], v[{X+24+i}:{X+24+i+1}], v[{X+28+i}:{X+28+i+1}]')
    for i in range(0, 4, 2):
        a(f'v_pk_add_f32 v[{X+i}:{X+i+1}], v[{X+i}:{X+i+1}], v[{X+8+i}:{X+8+i+1}]')
        a(f'v_pk_add_f32 v[{X+16+i}:{X+16+i+1}], v[{X+16+i}:{X+16+i+1}], v[{X+24+i}:{X+24+i+1}]')
    for i in range(0, 4, 2):
        a(f'v_pk_add_f32 v[{X+i}:{X+i+1}], v[{X+i}:{X+i+1}], v[{X+16+i}:{X+16+i+1}]')
    for i in range(4):
        a(f'v_and_or_b32 v{X+i}, v{X+i}, v153, {TF[i]}')
    a(f'buffer_store_dwordx4 v[{X}:{X+3}], v157, s[36:39], s33 offen sc1')
    a.label('L_bpub_done')
    stamp(7)
    if prof:
        a('s_waitcnt vmcnt(0)')
        stamp(9)
    if stopP: a('s_branch L_fin')
    a('s_cmp_ge_u32 s2, 32')
    a('s_cbranch_scc1 L_fin')
    a(f's_lshl_b32 s58, s30, 12\ns_lshl_b32 s59, s2, 15\ns_add_u32 s58, s58, s59\ns_add_u32 s58, s58, {WS_Y}')
    a('s_mov_b32 s68, s24\ns_mov_b32 s69, s25\ns_mov_b32 s70, 2048\ns_mov_b32 s71, 0x20000')
    a('s_lshl_b32 s59, s2, 6')
    a('v_and_b32 v8, 31, v0\nv_lshlrev_b32 v8, 1, v8')
    lds_wait(20, 'L_by', 'v6', 'v7', 's51', 1)
    stamp(12)
    a('s_cmp_eq_u32 s30, 0')
    a('s_cbranch_scc0 L_l2')
    a('s_mov_b32 s60, s4\ns_mov_b32 s61, s5\ns_mov_b32 s62, 2048\ns_mov_b32 s63, 0x20000')
    a('s_mov_b32 s64, s22\ns_mov_b32 s65, s23\ns_mov_b32 s66, 1024\ns_mov_b32 s67, 0x20000')
    a('s_and_b32 s72, s59, 1023')
    a(f'buffer_load_ushort v9, v8, s[60:63], s59 offen')
    a(f'buffer_load_ushort v10, v8, s[64:67], s72 offen')
    a.label('L_l2')
    for t in range(4):
        a(f'buffer_load_dwordx4 v[{X+4*t}:{X+4*t+3}], v4, s[36:39], s58 offen offset:{t*1024} sc1')
    a('s_waitcnt vmcnt(0)')
    for t in range(4):
        for i in range(4):
            a(f'v_xor_b32 v{X+4*t+i}, {TF[i]}, v{X+4*t+i}')
    a(f'v_or3_b32 v7, v{X}, v{X+1}, v{X+2}')
    for i in range(3, 15, 2):
        a(f'v_or3_b32 v7, v7, v{X+i}, v{X+i+1}')
    a(f'v_or_b32 v7, v7, v{X+15}')
    a('v_and_b32 v7, 0xfff, v7')
    a('v_cmp_ne_u32 vcc, 0, v7')
    a('s_cbranch_vccz L_l2_done')
    if sleep_l2: a(f's_sleep {sleep_l2}')
    a('s_branch L_l2')
    a.label('L_l2_done')
    stamp(10)
    for i in range(4):
        a(f'v_add_f32 v{X+i}, v{X+i}, v{X+4+i}')
        a(f'v_add_f32 v{X+8+i}, v{X+8+i}, v{X+12+i}')
    for i in range(4):
        a(f'v_add_f32 v{X+i}, v{X+i}, v{X+8+i}')
    nop(1)
    for i in range(4):
        dpp('v_add_f32', f'v{X+i}', f'v{X+i}', f'v{X+i}', 'row_ror:8')
    nop(1)
    for i in range(4):
        allreduce_rows('v_add_f32', f'v{X+i}', 'v6', 'v7')
    a(f's_lshl_b32 s73, s30, 7\ns_add_u32 s73, s73, {LDS_L2}')
    a('v_add_u32 v6, s73, v4')
    a('v_cmp_gt_u32 vcc, 8, v0')
    a('s_and_saveexec_b64 s[54:55], vcc')
    a(f'ds_write_b128 v6, v[{X}:{X+3}]')
    a('s_mov_b64 exec, s[54:55]')
    a('s_waitcnt lgkmcnt(0)')
    a('s_barrier')
    stamp(11)
    a('s_cmp_eq_u32 s30, 0')
    a('s_cbranch_scc0 L_fin')
    a('v_and_b32 v6, 31, v0\nv_lshlrev_b32 v6, 2, v6')
    a(f'v_add_u32 v6, {LDS_L2}, v6')
    for w in range(8):
        a(f'ds_read_b32 v{X+w}, v6 offset:{w*128}')
    a('v_lshlrev_b32 v9, 16, v9\nv_lshlrev_b32 v10, 16, v10')
    a('v_add_f32 v9, v9, v10')
    a('s_waitcnt lgkmcnt(0)')
    a(f'v_add_f32 v{X}, v{X}, v{X+1}\nv_add_f32 v{X+2}, v{X+2}, v{X+3}\nv_add_f32 v{X+4}, v{X+4}, v{X+5}\nv_add_f32 v{X+6}, v{X+6}, v{X+7}')
    a(f'v_add_f32 v{X}, v{X}, v{X+2}\nv_add_f32 v{X+4}, v{X+4}, v{X+6}')
    a(f'v_add_f32 v{X}, v{X}, v{X+4}')
    a(f'v_add_f32 v{X}, v{X}, v9')
    a(f'v_cvt_pk_bf16_f32 v{X}, v{X}, v{X}')
    a('v_cmp_gt_u32 vcc, 32, v0')
    a('s_and_saveexec_b64 s[54:55], vcc')
    a(f'buffer_store_short v{X}, v8, s[68:71], s59 offen')
    a('s_mov_b64 exec, s[54:55]')
    stamp(8)
    a('s_cmp_eq_u32 s2, 0')
    a('s_cbranch_scc0 L_fin')
    a(f'v_mov_b32 v{X+2}, s82\nv_mov_b32 v{X+3}, s83\nv_mov_b32 v6, {WS_EPOCH}')
    a('v_cmp_eq_u32 vcc, 0, v0')
    a('s_and_saveexec_b64 s[54:55], vcc')
    a(f'buffer_store_dwordx2 v[{X+2}:{X+3}], v6, s[36:39], 0 offen')
    a('s_mov_b64 exec, s[54:55]')
    a('s_branch L_fin')

    a.label('L_aux')
    a('s_sub_u32 s30, s30, 8')
    a('s_setprio 3')
    a('s_mov_b32 s40, s4\ns_mov_b32 s41, s5\ns_mov_b32 s42, 2048\ns_mov_b32 s43, 0x20000')
    a('s_mov_b32 s44, s10\ns_mov_b32 s45, s11\ns_mov_b32 s46, 0x400000\ns_mov_b32 s47, 0x20000')
    a(f's_mov_b32 s48, s16\ns_mov_b32 s49, s17\ns_mov_b32 s50, {512*1792*2}\ns_mov_b32 s51, 0x20000')
    a('s_mov_b32 s52, s12\ns_mov_b32 s53, s13\ns_mov_b32 s54, 0x400000\ns_mov_b32 s55, 0x20000')
    a(f's_mov_b32 s56, s20\ns_mov_b32 s57, s21\ns_mov_b32 s58, {512*1792*2}\ns_mov_b32 s59, 0x20000')
    a('s_mov_b32 s60, s18\ns_mov_b32 s61, s19\ns_mov_b32 s62, 3584\ns_mov_b32 s63, 0x20000')
    a('s_mul_i32 s68, s35, 28\ns_add_u32 s68, s68, s32')
    a('s_cmp_eq_u32 s30, 0\ns_cbranch_scc1 L_a0')
    a('s_cmp_eq_u32 s30, 1\ns_cbranch_scc1 L_a1')
    a('s_cmp_eq_u32 s30, 2\ns_cbranch_scc1 L_a2')
    a(f'v_mov_b32 v5, {LDS_FL}\nv_lshl_add_u32 v5, v0, 2, v5\nv_mov_b32 v6, 0')
    a('v_cmp_gt_u32 vcc, 8, v0')
    a('s_and_saveexec_b64 s[70:71], vcc')
    a('ds_write_b32 v5, v6')
    a('s_mov_b64 exec, s[70:71]')
    a('s_waitcnt lgkmcnt(0)')
    a('s_barrier')
    load_epoch()
    mk_tags()
    a('s_getreg_b32 s72, hwreg(HW_REG_XCC_ID)')
    a('v_mov_b32 v8, s72\nv_mov_b32 v9, 0\nv_mov_b32 v10, s82\nv_mov_b32 v11, s83')
    a(f's_lshl_b32 s72, s2, 4\ns_add_u32 s72, s72, {WS_XT}')
    a('v_mov_b32 v5, 0')
    a('v_cmp_eq_u32 vcc, 0, v0')
    a('s_and_saveexec_b64 s[70:71], vcc')
    a('buffer_store_dwordx4 v[8:11], v5, s[36:39], s72 offen sc1')
    a('s_mov_b64 exec, s[70:71]')
    a('s_branch L_acommon')

    def layernorm():
        for b in range(2):
            src = 8 + 4 * b
            F = 16
            for i in range(4):
                a(f'v_lshlrev_b32 v{F+2*i}, 16, v{src+i}')
                a(f'v_and_b32 v{F+2*i+1}, 0xffff0000, v{src+i}')
            a(f'v_add_f32 v24, v{F}, v{F+1}')
            for i in range(2, 8):
                a(f'v_add_f32 v24, v24, v{F+i}')
            allreduce64_add('v24', 'v26', 'v27')
            a(f'v_mul_f32 v24, {f32bits(1.0/512):#x}, v24')
            a('v_mov_b32 v25, 0')
            for i in range(8):
                a(f'v_sub_f32 v26, v{F+i}, v24')
                a('v_fmac_f32 v25, v26, v26')
            allreduce64_add('v25', 'v26', 'v27')
            a(f'v_mul_f32 v25, {f32bits(1.0/512):#x}, v25')
            a('v_cvt_pk_bf16_f32 v26, v24, v25')
            a('v_lshlrev_b32 v24, 16, v26')
            a('v_and_b32 v25, 0xffff0000, v26')
            a(f'v_add_f32 v25, {f32bits(1e-5):#x}, v25')
            a('v_cvt_pk_bf16_f32 v25, v25, v25')
            a('v_and_b32 v25, 0xffff0000, v25')
            a('v_sqrt_f32 v25, v25')
            nop(1)
            a('v_cvt_pk_bf16_f32 v25, v25, v25')
            a('v_and_b32 v25, 0xffff0000, v25')
            a('v_rcp_f32 v28, v25')
            for i in range(8):
                a(f'v_sub_f32 v{F+i}, v{F+i}, v24')
            for i in range(4):
                a(f'v_cvt_pk_bf16_f32 v26, v{F+2*i}, v{F+2*i+1}')
                a(f'v_lshlrev_b32 v{F+2*i}, 16, v26')
                a(f'v_and_b32 v{F+2*i+1}, 0xffff0000, v26')
            for i in range(8):
                a(f'v_mul_f32 v26, v{F+i}, v28')
                a(f'v_fma_f32 v27, -v26, v25, v{F+i}')
                a(f'v_fma_f32 v{F+i}, v27, v28, v26')
            for i in range(4):
                a(f'v_cvt_pk_bf16_f32 v{src+i}, v{F+2*i}, v{F+2*i+1}')

    def proj(tile_base, xn_addr_s, nks):
        a('v_lshrrev_b32 v5, 2, v3\nv_lshl_add_u32 v5, v2, 3, v5\nv_lshlrev_b32 v5, 7, v5\nv_and_b32 v6, 3, v3\nv_lshl_add_u32 v5, v6, 3, v5')
        a(f'v_add_u32 v5, {tile_base}, v5')
        a('v_lshrrev_b32 v30, 3, v3')
        a('v_lshlrev_b32 v30, 10, v30')
        a('v_lshl_add_u32 v30, v2, 4, v30')
        a(f'v_add_u32 v30, {xn_addr_s}, v30')
        for ks in range(nks):
            a(f'ds_read_b128 v[48:51], v30 offset:{ks*64}')
            for ct in range(4):
                a(f'ds_read_b64_tr_b16 v[{32+4*ct}:{33+4*ct}], v5 offset:{ks*4096+ct*32}')
                a(f'ds_read_b64_tr_b16 v[{34+4*ct}:{35+4*ct}], v5 offset:{ks*4096+ct*32+512}')
            for ct in range(4):
                a(f's_waitcnt lgkmcnt({2*(3-ct)})')
                c = '0' if ks == 0 else f'v[{64+4*ct}:{67+4*ct}]'
                a(f'v_mfma_f32_16x16x32_bf16 v[{64+4*ct}:{67+4*ct}], v[{32+4*ct}:{35+4*ct}], v[48:51], {c}')
        nop(8); nop(2)
        a('v_and_b32 v6, 3, v3')
        for i in range(4): a(f'v_mov_b32 v{16+i}, v{64+i}')
        for ct in range(1, 4):
            a(f'v_cmp_eq_u32 vcc, {ct}, v6')
            nop(2)
            for i in range(4): a(f'v_cndmask_b32 v{16+i}, v{16+i}, v{64+4*ct+i}, vcc')
        a('v_mov_b32 v20, 0xfffff000')
        for i in range(4): a(f'v_and_or_b32 v{16+i}, v{16+i}, v20, {TF[i]}')
        a('v_lshlrev_b32 v7, 6, v6\nv_lshl_add_u32 v7, v2, 4, v7')
        a('v_and_b32 v6, 4, v3')
        a('v_cmp_eq_u32 vcc, 0, v6')

    a.label('L_a0')
    a('buffer_load_dwordx4 v[8:11], v4, s[40:43], 0 offen')
    a('buffer_load_dwordx4 v[12:15], v4, s[40:43], 0 offen offset:1024')
    a('v_lshrrev_b32 v5, 3, v0\nv_lshlrev_b32 v5, 13, v5\nv_and_b32 v6, 7, v0\nv_lshl_add_u32 v5, v6, 4, v5')
    a('s_lshl_b32 s72, s35, 10\ns_and_b32 s73, s32, 7\ns_lshl_b32 s73, s73, 7\ns_add_u32 s72, s72, s73')
    a('s_lshr_b32 s73, s32, 3\ns_lshl_b32 s73, s73, 20\ns_add_u32 s72, s72, s73')
    for i in range(16):
        a(f's_mov_b32 m0, {LDS_WQ + i*1024}')
        if 'q' not in now: a(f'buffer_load_dwordx4 v5, s[44:47], s72 offen{NT} lds')
        if i < 15: a(f's_add_u32 s72, s72, {8*8192}')
    a('s_barrier')
    load_epoch()
    a('s_waitcnt vmcnt(16)' if 'q' not in now else 's_waitcnt vmcnt(0)')
    mk_tags()
    stamp(1)
    layernorm()
    a(f'v_add_u32 v5, {LDS_XN0}, v4')
    a('ds_write_b128 v5, v[8:11]')
    a('ds_write_b128 v5, v[12:15] offset:1024')
    a('s_waitcnt vmcnt(0) lgkmcnt(0)')
    stamp(2)
    a(f's_lshr_b32 s73, s32, 3\ns_lshl_b32 s73, s73, 8\ns_add_u32 s73, s73, {LDS_XN0}')
    proj(LDS_WQ, 's73', 4)
    a('v_lshrrev_b32 v6, 3, v3\nv_lshl_add_u32 v7, v6, 13, v7')
    a(f's_lshl_b32 s69, s35, 14\ns_lshr_b32 s72, s32, 3\ns_lshl_b32 s72, s72, 11\ns_add_u32 s69, s69, s72\ns_and_b32 s72, s32, 7\ns_lshl_b32 s72, s72, 8\ns_add_u32 s69, s69, s72\ns_add_u32 s69, s69, {WS_QP}')
    a('s_and_saveexec_b64 s[70:71], vcc')
    a('buffer_store_dwordx4 v[16:19], v7, s[36:39], s69 offen sc1')
    a('s_mov_b64 exec, s[70:71]')
    lds_set(12, 'v5', 'v6')
    stamp(3)
    a('s_branch L_acommon')

    a.label('L_a1')
    a('s_barrier')
    load_epoch()
    mk_tags()
    lds_wait(12, 'L_a1_p', 'v5', 'v6', 's75', 4)
    stamp(1)
    a(f's_lshl_b32 s72, s89, 14\ns_lshl_b32 s73, s88, 13\ns_add_u32 s72, s72, s73\ns_add_u32 s72, s72, {WS_QP}')
    a('s_add_u32 s73, s72, 4096')
    if noq: a('s_branch L_a1_qd')
    a.label('L_a1_q')
    for d in range(4):
        sr = 's72' if d < 2 else 's73'
        a(f'buffer_load_dwordx4 v[{8+8*d}:{11+8*d}], v4, s[36:39], {sr} offen offset:{(d&1)*2048} sc1')
        a(f'buffer_load_dwordx4 v[{12+8*d}:{15+8*d}], v4, s[36:39], {sr} offen offset:{(d&1)*2048+1024} sc1')
    a('s_waitcnt vmcnt(0)')
    for r in range(8, 40):
        a(f'v_xor_b32 v{r}, {TF[r&3]}, v{r}')
    a('v_or3_b32 v6, v8, v9, v10')
    for r in range(11, 39, 2):
        a(f'v_or3_b32 v6, v6, v{r}, v{r+1}')
    a('v_or_b32 v6, v6, v39')
    a('v_and_b32 v6, 0xfff, v6')
    a('v_cmp_ne_u32 vcc, 0, v6')
    a('s_cbranch_vccz L_a1_qd')
    if sleep_q: a(f's_sleep {sleep_q}')
    a('s_branch L_a1_q')
    a.label('L_a1_qd')
    for r in range(0, 8, 2):
        a(f'v_pk_add_f32 v[{8+r}:{9+r}], v[{8+r}:{9+r}], v[{16+r}:{17+r}]')
        a(f'v_pk_add_f32 v[{24+r}:{25+r}], v[{24+r}:{25+r}], v[{32+r}:{33+r}]')
    for r in range(0, 8, 2):
        a(f'v_pk_add_f32 v[{8+r}:{9+r}], v[{8+r}:{9+r}], v[{24+r}:{25+r}]')
    a('v_cvt_pk_bf16_f32 v16, v8, v9\nv_cvt_pk_bf16_f32 v17, v10, v11\nv_cvt_pk_bf16_f32 v18, v12, v13\nv_cvt_pk_bf16_f32 v19, v14, v15')
    a(f'v_lshlrev_b32 v5, 3, v0\nv_add_u32 v5, {LDS_Q}, v5')
    a('ds_write_b64 v5, v[16:17]')
    a('ds_write_b64 v5, v[18:19] offset:512')
    a('s_waitcnt lgkmcnt(0)')
    lds_set(0, 'v5', 'v6')
    stamp(2)
    a('s_branch L_acommon')

    a.label('L_a2')
    a('s_cmp_ge_u32 s32, 28')
    a('s_cbranch_scc1 L_a2_skip')
    a('buffer_load_dwordx4 v[8:11], v4, s[40:43], 0 offen')
    a('buffer_load_dwordx4 v[12:15], v4, s[40:43], 0 offen offset:1024')
    a('s_mov_b32 s72, 3584\nv_lshrrev_b32 v5, 3, v0\nv_mul_lo_u32 v5, v5, s72\nv_and_b32 v6, 7, v0\nv_lshl_add_u32 v5, v6, 4, v5')
    a(f's_mul_i32 s72, s35, {64*3584}\ns_lshl_b32 s73, s32, 7\ns_add_u32 s72, s72, s73')
    for i in range(8):
        a(f's_mov_b32 m0, {LDS_W1 + i*1024}')
        if '1' not in now: a(f'buffer_load_dwordx4 v5, s[48:51], s72 offen{NT} lds')
        if i < 7: a(f's_add_u32 s72, s72, {8*3584}')
    a('v_and_b32 v6, 1, v2\nv_lshlrev_b32 v6, 3, v6')
    a('s_lshl_b32 s72, s68, 4')
    a('buffer_load_dwordx2 v[80:81], v6, s[60:63], s72 offen')
    a('s_barrier')
    load_epoch()
    a('s_waitcnt vmcnt(9)' if '1' not in now else 's_waitcnt vmcnt(1)')
    mk_tags()
    layernorm()
    a(f'v_add_u32 v5, {LDS_XN2}, v4')
    a('ds_write_b128 v5, v[8:11]')
    a('ds_write_b128 v5, v[12:15] offset:1024')
    a('s_waitcnt vmcnt(0) lgkmcnt(0)')
    a(f's_lshl_b32 s73, s35, 7\ns_add_u32 s73, s73, {LDS_XN2}')
    proj(LDS_W1, 's73', 2)
    a('v_lshrrev_b32 v6, 3, v3\nv_lshl_add_u32 v7, v6, 8, v7')
    a(f's_lshl_b32 s69, s32, 12\ns_lshl_b32 s72, s35, 9\ns_add_u32 s69, s69, s72\ns_add_u32 s69, s69, {WS_HP}')
    a('s_and_saveexec_b64 s[70:71], vcc')
    a('buffer_store_dwordx4 v[16:19], v7, s[36:39], s69 offen sc1')
    a('s_mov_b64 exec, s[70:71]')
    a('v_and_b32 v5, 7, v3\nv_lshlrev_b32 v5, 9, v5\nv_lshrrev_b32 v6, 3, v3\nv_lshl_add_u32 v5, v6, 8, v5\nv_and_b32 v6, 1, v2\nv_lshl_add_u32 v5, v6, 4, v5')
    a(f's_lshr_b32 s72, s68, 3\ns_lshl_b32 s72, s72, 12\ns_and_b32 s73, s68, 7\ns_lshl_b32 s73, s73, 5\ns_add_u32 s72, s72, s73\ns_add_u32 s72, s72, {WS_HP}')
    a('s_sleep 16')
    a.label('L_a2_h')
    a('buffer_load_dwordx4 v[64:67], v5, s[36:39], s72 offen sc1')
    a('s_waitcnt vmcnt(0)')
    for i in range(4): a(f'v_xor_b32 v{64+i}, {TF[i]}, v{64+i}')
    a('v_or3_b32 v6, v64, v65, v66\nv_or_b32 v6, v6, v67\nv_and_b32 v6, 0xfff, v6')
    a('v_cmp_ne_u32 vcc, 0, v6')
    a('s_cbranch_vccz L_a2_hd')
    a('s_sleep 8')
    a('s_branch L_a2_h')
    a.label('L_a2_hd')
    for ctl in ['quad_perm:[1,0,3,2]', 'quad_perm:[2,3,0,1]', 'row_half_mirror']:
        nop(1)
        for i in range(4):
            dpp('v_add_f32', f'v{64+i}', f'v{64+i}', f'v{64+i}', ctl)
    nop(1)
    a('v_cvt_pk_bf16_f32 v68, v64, v65\nv_cvt_pk_bf16_f32 v69, v66, v67')
    a('v_lshlrev_b32 v64, 16, v68\nv_and_b32 v65, 0xffff0000, v68\nv_lshlrev_b32 v66, 16, v69\nv_and_b32 v67, 0xffff0000, v69')
    a('v_lshlrev_b32 v72, 16, v80\nv_and_b32 v73, 0xffff0000, v80\nv_lshlrev_b32 v74, 16, v81\nv_and_b32 v75, 0xffff0000, v81')
    for i in range(4):
        a(f'v_add_f32 v{64+i}, v{64+i}, v{72+i}')
    a('v_cvt_pk_bf16_f32 v68, v64, v65\nv_cvt_pk_bf16_f32 v69, v66, v67')
    a('v_lshlrev_b32 v64, 16, v68\nv_and_b32 v65, 0xffff0000, v68\nv_lshlrev_b32 v66, 16, v69\nv_and_b32 v67, 0xffff0000, v69')
    kk = -2.0 * math.sqrt(2.0 / math.pi) * math.log2(math.e)
    a(f's_mov_b32 s72, {f32bits(0.044715):#x}\ns_mov_b32 s73, {f32bits(kk):#x}')
    for i in range(4):
        x = f'v{64+i}'; t = f'v{72+i}'
        a(f'v_mul_f32 {t}, {x}, {x}')
        a(f'v_mul_f32 {t}, {t}, {x}')
        a(f'v_fma_f32 {t}, {t}, s72, {x}')
        a(f'v_mul_f32 {t}, s73, {t}')
        a(f'v_exp_f32 {t}, {t}')
        nop(1)
        a(f'v_add_f32 {t}, 1.0, {t}')
        a(f'v_rcp_f32 {t}, {t}')
        nop(1)
        a(f'v_mul_f32 {x}, {x}, {t}')
    a('v_cvt_pk_bf16_f32 v68, v64, v65\nv_cvt_pk_bf16_f32 v69, v66, v67')
    a('v_cmp_gt_u32 vcc, 2, v2')
    nop(2)
    a('v_cndmask_b32 v68, 0, v68, vcc\nv_cndmask_b32 v69, 0, v69, vcc')
    a(f'v_lshlrev_b32 v5, 3, v0\nv_add_u32 v5, {LDS_H}, v5')
    a('ds_write_b64 v5, v[68:69]')
    a('s_waitcnt lgkmcnt(0)')
    lds_set(4, 'v5', 'v6')
    a('s_branch L_acommon')
    a.label('L_a2_skip')
    a('s_barrier')
    load_epoch()
    mk_tags()

    a.label('L_acommon')
    LO = 76; L2 = 92; TO = 108; T2 = 124; ACC = 8
    a('v_lshlrev_b32 v5, 12, v2\nv_lshl_add_u32 v5, v3, 4, v5')
    a('s_lshl_b32 s72, s35, 9\ns_lshl_b32 s73, s32, 4\ns_add_u32 s72, s72, s73\ns_lshl_b32 s72, s72, 10')
    a('s_lshl_b32 s73, s30, 8\ns_add_u32 s72, s72, s73')
    for i in range(4):
        if 'o' not in now: a(f'buffer_load_dwordx4 v[{LO+4*i}:{LO+4*i+3}], v5, s[52:55], s72 offen offset:{i*1024}{NT}')
    a('s_mov_b32 s76, 0x05040100\ns_mov_b32 s77, 0x07060302')
    a('s_cmp_ge_u32 s32, 28')
    a('s_cbranch_scc1 L_nomlp')
    a('v_and_b32 v6, 1, v2\nv_lshlrev_b32 v6, 12, v6\nv_lshl_add_u32 v6, v3, 4, v6')
    a('s_lshl_b32 s74, s68, 13\ns_add_u32 s74, s74, s73')
    for i in range(4):
        if '2' not in now: a(f'buffer_load_dwordx4 v[{L2+4*i}:{L2+4*i+3}], v6, s[56:59], s74 offen offset:{i*1024}{NT}')
    lds_wait(4, 'L_ah', 'v5', 'v6', 's75', 4)
    a(f'v_lshlrev_b32 v5, 3, v0\nv_add_u32 v5, {LDS_H}, v5')
    a('ds_read_b64 v[40:41], v5')
    a('s_waitcnt vmcnt(0) lgkmcnt(0)')
    for m in range(8):
        e, o = m >> 1, m & 1
        sel = 's77' if o else 's76'
        a(f'v_perm_b32 v{T2+2*m}, v{L2+4+e}, v{L2+e}, {sel}')
        a(f'v_perm_b32 v{T2+2*m+1}, v{L2+12+e}, v{L2+8+e}, {sel}')
    nop(2)
    for m in range(8):
        a(f'v_mfma_f32_16x16x16_bf16 v[{ACC+4*m}:{ACC+4*m+3}], v[40:41], v[{T2+2*m}:{T2+2*m+1}], 0')
    a('s_branch L_mlpdone')
    a.label('L_nomlp')
    for i in range(32):
        a(f'v_mov_b32 v{ACC+i}, 0')
    a('s_waitcnt vmcnt(0)')
    a.label('L_mlpdone')
    for m in range(8):
        e, o = m >> 1, m & 1
        sel = 's77' if o else 's76'
        a(f'v_perm_b32 v{TO+2*m}, v{LO+4+e}, v{LO+e}, {sel}')
        a(f'v_perm_b32 v{TO+2*m+1}, v{LO+12+e}, v{LO+8+e}, {sel}')
    a('v_lshrrev_b32 v5, 3, v3\nv_lshlrev_b32 v5, 4, v5\nv_and_b32 v6, 7, v3\nv_add_u32 v5, v5, v6')
    a('v_lshlrev_b32 v43, 7, v5')
    a('v_lshl_add_u32 v42, v2, 4, v43')
    a(f's_lshl_b32 s72, s35, 17\ns_add_u32 s72, s72, {WS_SLOT}')
    a('s_lshl_b32 s74, s32, 12\ns_add_u32 s74, s74, s72')
    a(f's_add_u32 s78, s74, {8*128}')
    a('v_and_b32 v6, 1, v2')
    a('v_lshrrev_b32 v5, 1, v2\nv_lshlrev_b32 v5, 4, v5\nv_lshrrev_b32 v7, 2, v3\nv_add_u32 v5, v5, v7')
    a('s_lshl_b32 s72, s30, 2')
    a('v_add_u32 v5, s72, v5')
    a('v_add_u32 v7, s2, v5\nv_and_b32 v7, 255, v7\nv_lshlrev_b32 v7, 7, v7')
    a('v_lshl_add_u32 v5, v5, 15, v7')
    a('v_and_b32 v7, 3, v3\nv_lshl_add_u32 v5, v7, 5, v5\nv_lshl_add_u32 v60, v6, 4, v5')
    a(f's_mov_b32 s72, {WS_Y}')
    a('v_lshrrev_b32 v5, 15, v60\nv_lshlrev_b32 v5, 4, v5')
    a(f's_mov_b32 s73, {WS_XT}')
    a.label('L_xt')
    a('buffer_load_dwordx4 v[44:47], v5, s[36:39], s73 offen sc1')
    a('s_waitcnt vmcnt(0)')
    a('v_xor_b32 v46, s82, v46\nv_xor_b32 v47, s83, v47\nv_or_b32 v46, v46, v47')
    a('v_cmp_ne_u32 vcc, 0, v46')
    a('s_cbranch_vccz L_xt_d')
    a('s_sleep 8')
    a('s_branch L_xt')
    a.label('L_xt_d')
    a('s_getreg_b32 s73, hwreg(HW_REG_XCC_ID)')
    a('v_cmp_eq_u32 s[98:99], s73, v44')
    a('v_mov_b32 v61, 0xfffff000')
    a(f'v_lshlrev_b32 v62, 3, v0\nv_add_u32 v62, {LDS_OA}, v62')
    a(f'v_mov_b32 v63, {LDS_FL+16}')
    stamp(4)
    a('s_barrier')
    stamp(5)
    if stopP:
        a('s_add_u32 s30, s30, 8')
        a('s_branch L_fin')
    a('s_cmp_eq_u32 s30, 0')
    a('s_cbranch_scc0 L_l1_wait')
    if prof: a('s_mov_b32 s94, 0')
    a.label('L_l1')
    if prof: a('s_add_u32 s94, s94, 1')
    a('buffer_load_dwordx4 v[44:47], v42, s[36:39], s74 offen sc1')
    a('buffer_load_dwordx4 v[48:51], v42, s[36:39], s78 offen sc1')
    a('buffer_load_dwordx4 v[52:55], v43, s[36:39], s74 offen offset:64 sc1')
    a('buffer_load_dwordx4 v[64:67], v43, s[36:39], s78 offen offset:64 sc1')
    a('s_waitcnt vmcnt(0)')
    for i in range(4):
        a(f'v_xor_b32 v{44+i}, {TF[i]}, v{44+i}')
        a(f'v_xor_b32 v{48+i}, {TF[i]}, v{48+i}')
        a(f'v_xor_b32 v{52+i}, {TF[i]}, v{52+i}')
        a(f'v_xor_b32 v{64+i}, {TF[i]}, v{64+i}')
    a('v_or3_b32 v6, v44, v45, v46\nv_or3_b32 v6, v6, v47, v48\nv_or3_b32 v6, v6, v49, v50\nv_or3_b32 v6, v6, v51, v52')
    a('v_or3_b32 v6, v6, v53, v54\nv_or3_b32 v6, v6, v55, v64\nv_or3_b32 v6, v6, v65, v66\nv_or_b32 v6, v6, v67')
    a('v_and_b32 v6, 0xfff, v6')
    a('v_cmp_ne_u32 vcc, 0, v6')
    a('s_cbranch_vccz L_l1_done')
    if sleep_l1: a(f's_sleep {sleep_l1}')
    a('s_branch L_l1')
    a.label('L_l1_done')
    stamp(6)
    if prof: a('v_writelane_b32 v167, s94, 10')
    R8 = ['quad_perm:[1,0,3,2]', 'quad_perm:[2,3,0,1]', 'row_half_mirror']
    a('v_max_f32 v56, v52, v64')
    for ctl in R8:
        nop(2)
        dpp('v_max_f32', 'v56', 'v56', 'v56', ctl)
    a('v_sub_f32 v52, v52, v56\nv_sub_f32 v64, v64, v56')
    a('v_exp_f32 v52, v52\nv_exp_f32 v64, v64')
    nop(1)
    a('v_mul_f32 v57, v52, v53')
    a('v_fmac_f32 v57, v64, v65')
    for i in range(4):
        a(f'v_mul_f32 v{44+i}, v{44+i}, v52')
        a(f'v_fmac_f32 v{44+i}, v{48+i}, v64')
    for ctl in R8:
        nop(1)
        dpp('v_add_f32', 'v57', 'v57', 'v57', ctl)
        for i in range(4):
            dpp('v_add_f32', f'v{44+i}', f'v{44+i}', f'v{44+i}', ctl)
    nop(1)
    a('v_rcp_f32 v57, v57')
    nop(1)
    for i in range(4):
        a(f'v_mul_f32 v{44+i}, v{44+i}, v57')
    a('v_cvt_pk_bf16_f32 v58, v44, v45\nv_cvt_pk_bf16_f32 v59, v46, v47')
    a('ds_write_b64 v62, v[58:59]')
    a('v_mov_b32 v6, 1')
    a('ds_write_b32 v63, v6')
    a('s_branch L_l1_go')
    a.label('L_l1_wait')
    a('ds_read_b32 v6, v63')
    a('ds_read_b64 v[58:59], v62')
    a('s_waitcnt lgkmcnt(0)')
    a('v_readfirstlane_b32 s75, v6')
    a('s_cmp_eq_u32 s75, 0')
    a('s_cbranch_scc1 L_l1_wait')
    a.label('L_l1_go')
    nop(2)
    for m in range(8):
        a(f'v_mfma_f32_16x16x16_bf16 v[{ACC+4*m}:{ACC+4*m+3}], v[58:59], v[{TO+2*m}:{TO+2*m+1}], v[{ACC+4*m}:{ACC+4*m+3}]')
    a('v_and_b32 v6, 1, v2')
    a('v_cmp_eq_u32 vcc, 1, v6')
    nop(8)
    for i in range(4):
        a(f'v_cndmask_b32 v{44+i}, v{ACC+4*i}, v{ACC+4*(i+4)}, vcc')
    for i in range(4):
        a(f'v_and_or_b32 v{44+i}, v{44+i}, v61, {TF[i]}')
    a('s_andn2_b64 exec, exec, s[98:99]')
    a('buffer_store_dwordx4 v[44:47], v60, s[36:39], s72 offen sc1')
    a('s_mov_b64 exec, s[98:99]')
    a('buffer_store_dwordx4 v[44:47], v60, s[36:39], s72 offen')
    a('s_mov_b64 exec, -1')
    lds_set(20, 'v5', 'v6')
    stamp(7)
    if prof:
        a('s_waitcnt vmcnt(0)')
        stamp(8)
    a('s_add_u32 s30, s30, 8')
    a.label('L_fin')
    if prof:
        a(f's_lshl_b32 s92, s2, 4\ns_add_u32 s92, s92, s30\ns_lshl_b32 s92, s92, 8\ns_add_u32 s92, s92, {WS_PROF}')
        a('v_writelane_b32 v167, s96, 0')
        a('v_lshlrev_b32 v5, 2, v0')
        a('buffer_store_dword v167, v5, s[36:39], s92 offen')
    a.label('L_end')
    return wrap(a.text(), 256, 768, LDS_TOTAL, nvgpr=168, accum=168)

if __name__ == '__main__':
    open('k7.s', 'w').write(gen())
    open('k7p.s', 'w').write(gen(prof=True))
    open('k7p_rot3.s', 'w').write(gen(prof=True, rot=3))
    open('k7p_stop.s', 'w').write(gen(prof=True, stopP=True))
    base = dict(prof=True, stopP=True, noq=True, now='q1o2')
    open('k7p_a.s', 'w').write(gen(**base))
    open('k7p_a_noswz.s', 'w').write(gen(noswz=True, **base))
    open('k7p_a_nothr.s', 'w').write(gen(nthr=0, **base))
    open('k7p_a_nothr_noswz.s', 'w').write(gen(nthr=0, noswz=True, **base))
    open('k7p_a_w8.s', 'w').write(gen(window=8, **base))
    open('k7p_s_nothr.s', 'w').write(gen(prof=True, stopP=True, nthr=0))
    open('k7p_s_w8.s', 'w').write(gen(prof=True, stopP=True, window=8))
    open('k7p_s_w6.s', 'w').write(gen(prof=True, stopP=True, window=6))
    open('k7p_s_thr8.s', 'w').write(gen(prof=True, stopP=True, nthr=8))
```

```python
import sys, math, struct
from common import *

def f32bits(x): return struct.unpack('<I', struct.pack('<f', x))[0]

LDS_K = 0
LDS_WQ = 131072
LDS_W1 = 147456
LDS_XN0 = 155648
LDS_XN2 = 157696
LDS_Q = 159744
LDS_H = 160768
LDS_MX = 161280
LDS_LW = 161408
LDS_FL = 161536
LDS_OA = 161792
LDS_L2 = 162304
LDS_TOTAL = 163840

WS_EPOCH = 0x40000
WS_QS = 0
WS_SLOT = 0x100000
WS_Y = 0x200000
WS_XT = 0x20000
WS_HP = 0x50000
WS_QP = 0x80000
WS_PROF = 0x800000

CSCALE = (128 ** -0.5) * math.log2(math.e)

def gen(window=4, nthr=16, prof=False, sleep_q=4, sleep_l1=1, sleep_l2=1, stopP=False, noswz=False, noq=False, now='', rot=0, qk_at=8, pv0_at=12, wtrig=8, pre=0, q_delay=0, h_delay=16, burst=(0,0,0), auxexit=False, nocomp=False, mimic=True):
    a = Asm()
    NT = ' nt'
    def stamp(idx):
        if not prof: return
        a('s_memrealtime s[92:93]')
        a('s_waitcnt lgkmcnt(0)')
        a(f's_sub_u32 s92, s92, s96')
        a(f'v_writelane_b32 v167, s92, {idx}')
    def nop(n):
        a(f's_nop {n-1}')
    def allreduce_rows(op, v, t1, t2):
        a(f'v_mov_b32 {t1}, {v}')
        a(f'v_mov_b32 {t2}, {v}')
        nop(2)
        a(f'v_permlane16_swap_b32 {t1}, {t2}')
        nop(1)
        a(f'{op} {v}, {t1}, {t2}')
        a(f'v_mov_b32 {t1}, {v}')
        a(f'v_mov_b32 {t2}, {v}')
        nop(2)
        a(f'v_permlane32_swap_b32 {t1}, {t2}')
        nop(1)
        a(f'{op} {v}, {t1}, {t2}')
    def dpp(op, d, s0, s1, ctrl):
        a(f'{op}_dpp {d}, {s0}, {s1} {ctrl} row_mask:0xf bank_mask:0xf')
    def allreduce64_add(v, t1, t2):
        for r in (8, 4, 2, 1):
            nop(2)
            dpp('v_add_f32', v, v, v, f'row_ror:{r}')
        nop(1)
        allreduce_rows('v_add_f32', v, t1, t2)
    def lds_wait(flag_off, label, tmpa, tmpd, sreg, sleep, cmp='ne0', val=0):
        a(f'v_mov_b32 {tmpa}, {LDS_FL+flag_off}')
        a.label(label)
        a(f'ds_read_b32 {tmpd}, {tmpa}')
        a('s_waitcnt lgkmcnt(0)')
        a(f'v_readfirstlane_b32 {sreg}, {tmpd}')
        if cmp == 'ne0':
            a(f's_cmp_eq_u32 {sreg}, 0')
            a(f's_cbranch_scc0 {label}_d')
        else:
            a(f's_cmp_lt_u32 {sreg}, {val}')
            a(f's_cbranch_scc0 {label}_d')
        if sleep: a(f's_sleep {sleep}')
        a(f's_branch {label}')
        a.label(label + '_d')
    def lds_set(flag_off, tmpa, tmpd):
        a(f'v_mov_b32 {tmpa}, {LDS_FL+flag_off}\nv_mov_b32 {tmpd}, 1')
        a(f'ds_write_b32 {tmpa}, {tmpd}')
    TF = ['s84', 's85', 's86', 's87']

    a('s_cmp_ge_u32 s2, 256')
    a('s_cbranch_scc1 L_end')
    a('s_load_dwordx16 s[4:19], s[0:1], 0')
    a('s_load_dwordx8 s[20:27], s[0:1], 64')
    a('s_load_dwordx2 s[28:29], s[0:1], 96')
    if prof:
        a('s_memrealtime s[96:97]')
        a('v_mov_b32 v167, 0')
    a('v_lshrrev_b32 v1, 6, v0')
    a('v_and_b32 v0, 63, v0')
    a(f's_add_u32 s31, s2, {rot}')
    a('s_and_b32 s31, s31, 7')
    a('v_readfirstlane_b32 s30, v1')
    a('s_lshr_b32 s32, s2, 3')
    a('v_lshrrev_b32 v2, 4, v0')
    a('v_and_b32 v3, 15, v0')
    a('v_lshlrev_b32 v4, 4, v0')
    a('s_waitcnt lgkmcnt(0)')
    a('s_mov_b32 s36, s28\ns_mov_b32 s37, s29\ns_mov_b32 s38, 0x10000000\ns_mov_b32 s39, 0x20000')
    a('s_lshr_b32 s88, s31, 2')
    a('s_lshl_b32 s89, s31, 1\ns_lshr_b32 s90, s32, 4\ns_add_u32 s89, s89, s90\ns_and_b32 s89, s89, 7')
    a('s_and_b32 s90, s32, 15')
    a('s_add_u32 s35, s31, 1\ns_and_b32 s35, s35, 3\ns_lshl_b32 s35, s35, 1\ns_lshr_b32 s34, s31, 2\ns_add_u32 s35, s35, s34')
    a(f's_lshl_b32 s33, s89, 17\ns_lshl_b32 s34, s88, 11\ns_add_u32 s33, s33, s34\ns_add_u32 s33, s33, {WS_SLOT}')
    def load_epoch():
        a(f's_load_dwordx2 s[80:81], s[28:29], {WS_EPOCH}')
    def mk_tags(aux8=False):
        a('s_waitcnt lgkmcnt(0)')
        a('s_add_u32 s82, s80, 1\ns_addc_u32 s83, s81, 0')
        a('s_and_b32 s84, s82, 0xfff')
        a('s_bfe_u32 s85, s82, 0xc000c')
        a('s_lshr_b32 s86, s82, 24\ns_lshl_b32 s87, s83, 8\ns_or_b32 s86, s86, s87\ns_and_b32 s86, s86, 0xfff')
        a('s_bfe_u32 s87, s83, 0xc0004')
        if aux8:
            a('s_and_b32 s64, s82, 0xff\ns_bfe_u32 s65, s82, 0x80008\ns_bfe_u32 s66, s82, 0x80010\ns_lshr_b32 s67, s82, 24')
    a('s_cmp_ge_u32 s30, 8')
    a('s_cbranch_scc1 L_aux')

    VV = 8; X = 72; S = 104; P = 120; T = 128
    a('s_mov_b32 s40, s6\ns_mov_b32 s41, s7\ns_mov_b32 s42, 0x2000000\ns_mov_b32 s43, 0x20000')
    a('s_mov_b32 s44, s8\ns_mov_b32 s45, s9\ns_mov_b32 s46, 0x2000000\ns_mov_b32 s47, 0x20000')
    a('s_lshl_b32 s48, s31, 5\ns_add_u32 s48, s48, s32\ns_lshl_b32 s48, s48, 17')
    a('s_lshl_b32 s49, s30, 10')
    a('s_add_u32 s48, s48, s49')
    a('s_lshl_b32 s49, s30, 14')
    a('v_lshlrev_b32 v5, 2, v2')
    a('v_lshlrev_b32 v6, 8, v2')
    for r in range(4):
        a(f'v_add_u32 v7, {r}, v5')
        a('v_xor_b32 v7, v7, v3' if not noswz else 'v_mov_b32 v7, v3')
        a(f'v_lshl_add_u32 v{140+r}, v7, 4, v6')
    seq = [('K', i) for i in range(16)] + [('V', i) for i in range(16)]
    issued = 0
    def issue(kind, i):
        nonlocal issued
        nowait = False
        if kind == 'V':
            if qk_at - burst[0] <= i < qk_at: nowait = True
            if pv0_at - burst[1] <= i < pv0_at: nowait = True
            if 16 - burst[2] <= i < 16: nowait = True
        if issued >= window and issued < nthr and not nowait:
            a(f's_waitcnt vmcnt({window-1})')
        if kind == 'K':
            a(f's_add_u32 m0, s49, {i*1024}')
            a(f's_add_u32 s50, s48, {i*8192}')
            a(f'buffer_load_dwordx4 v{140+(i&3)}, s[40:43], s50 offen{NT} lds')
        else:
            a(f's_add_u32 s50, s48, {i*8192}')
            a(f'buffer_load_dwordx4 v[{VV+4*i}:{VV+4*i+3}], v4, s[44:47], s50 offen{NT}')
        issued += 1
    k = 0
    while k < pre:
        issue(*seq[k]); k += 1
    a('s_barrier')
    while k < 4:
        issue(*seq[k]); k += 1
    load_epoch()
    a('v_lshrrev_b32 v5, 2, v3')
    a('v_lshlrev_b32 v5, 8, v5')
    a(f'v_lshl_add_u32 v5, v2, 4, v5')
    a(f'v_add_u32 v158, {LDS_Q}, v5')
    a('v_and_b32 v5, 3, v3\nv_lshlrev_b32 v5, 2, v5\nv_lshrrev_b32 v6, 2, v3\nv_add_u32 v5, v5, v6\nv_lshlrev_b32 v5, 8, v5')
    a('v_add_u32 v5, s49, v5')
    for j in range(4):
        a(f'v_or_b32 v6, {4*j}, v2')
        a('v_xor_b32 v6, v6, v3')
        a(f'v_lshl_add_u32 v{144+j}, v6, 4, v5')
    a('s_mov_b32 s56, 0x05040100\ns_mov_b32 s57, 0x07060302')
    a('v_mov_b32 v153, 0xfffff000')
    a('v_lshlrev_b32 v5, 9, v2')
    a('v_lshl_add_u32 v5, v3, 5, v5')
    a('v_add_u32 v154, s49, v5')
    a(f's_mov_b32 s52, {f32bits(math.log2(math.e) if mimic else CSCALE):#x}')
    a('v_and_b32 v148, 0x33, v0')
    a('v_lshrrev_b32 v5, 3, v0')
    a('s_lshl_b32 s53, s30, 3')
    a('v_add_u32 v5, s53, v5')
    a('v_and_b32 v6, 7, v0')
    a('v_lshlrev_b32 v7, 6, v5\nv_lshl_add_u32 v7, v6, 4, v7')
    a('s_lshl_b32 s53, s30, 4\ns_add_u32 s53, s53, 2048')
    a('v_mov_b32 v156, s53')
    a('v_cmp_gt_u32 vcc, 4, v6')
    a('v_add_u32 v157, s90, v5\nv_and_b32 v157, 15, v157\nv_lshlrev_b32 v157, 7, v157')
    a('v_cndmask_b32 v156, v156, v7, vcc')
    a('v_lshl_add_u32 v157, v5, 12, v157\nv_lshl_add_u32 v157, v6, 4, v157')
    def issue_to(n):
        nonlocal k
        while k < 16 + n:
            issue(*seq[k]); k += 1
            if k == 16 + wtrig:
                a('s_cmp_eq_u32 s30, 0')
                a('s_cbranch_scc0 L_nowt')
                lds_set(24, 'v5', 'v6')
                a.label('L_nowt')
    issue_to(qk_at)
    stamp(1)
    lds_wait(0, 'L_bq', 'v5', 'v6', 's51', 2)
    stamp(2)
    for j in range(4):
        a(f'ds_read_b128 v[{X+16+4*j}:{X+16+4*j+3}], v158 offset:{j*64}')
    a(f's_waitcnt vmcnt({min(qk_at, window)})')
    for t in range(4):
        for j in range(4):
            a(f'ds_read_b128 v[{X+4*j}:{X+4*j+3}], v{144+j} offset:{t*4096}')
        for j in range(4):
            a(f's_waitcnt lgkmcnt({3-j})')
            c = '0' if j == 0 else f'v[{S+4*t}:{S+4*t+3}]'
            a(f'v_mfma_f32_16x16x32_bf16 v[{S+4*t}:{S+4*t+3}], v[{X+4*j}:{X+4*j+3}], v[{X+16+4*j}:{X+16+4*j+3}], {c}')
    nop(8); nop(2)
    if mimic:
        a(f's_mov_b32 s60, {f32bits(128 ** -0.5):#x}\ns_mov_b32 s61, s60')
        for i in range(0, 16, 2):
            a(f'v_cvt_pk_bf16_f32 v{T+(i>>1)}, v{S+i}, v{S+i+1}')
        for i in range(0, 16, 2):
            a(f'v_lshlrev_b32 v{S+i}, 16, v{T+(i>>1)}')
            a(f'v_and_b32 v{S+i+1}, 0xffff0000, v{T+(i>>1)}')
        for i in range(0, 16, 2):
            a(f'v_pk_mul_f32 v[{S+i}:{S+i+1}], v[{S+i}:{S+i+1}], s[60:61]')
        for i in range(0, 16, 2):
            a(f'v_cvt_pk_bf16_f32 v{T+(i>>1)}, v{S+i}, v{S+i+1}')
        for i in range(0, 16, 2):
            a(f'v_lshlrev_b32 v{S+i}, 16, v{T+(i>>1)}')
            a(f'v_and_b32 v{S+i+1}, 0xffff0000, v{T+(i>>1)}')
    a(f'v_max3_f32 v5, v{S}, v{S+1}, v{S+2}')
    for i in range(3, 15, 2):
        a(f'v_max3_f32 v5, v5, v{S+i}, v{S+i+1}')
    a(f'v_max_f32 v5, v5, v{S+15}')
    allreduce_rows('v_max_f32', 'v5', 'v6', 'v7')
    a('v_mul_f32 v151, s52, v5')
    a('v_lshrrev_b32 v6, 2, v3')
    a('v_lshlrev_b32 v6, 5, v6')
    a(f's_lshl_b32 s53, s30, 2\ns_add_u32 s53, s53, {LDS_MX}')
    a('v_add_u32 v7, s53, v6')
    a('v_cmp_eq_u32 vcc, 0, v148')
    a('s_and_saveexec_b64 s[54:55], vcc')
    a('ds_write_b32 v7, v151')
    a('s_mov_b64 exec, s[54:55]')
    a(f'v_mov_b32 v149, {LDS_FL+8}\nv_mov_b32 v150, 1')
    a('v_cmp_eq_u32 vcc, 0, v0')
    a('s_and_saveexec_b64 s[54:55], vcc')
    a('ds_add_u32 v149, v150')
    a('s_mov_b64 exec, s[54:55]')
    for i in range(16):
        a(f'v_fma_f32 v{S+i}, v{S+i}, s52, -v151')
    for i in range(16):
        a(f'v_exp_f32 v{S+i}, v{S+i}')
    nop(1)
    a(f'v_add_f32 v152, v{S}, v{S+1}')
    for i in range(2, 16):
        a(f'v_add_f32 v152, v152, v{S+i}')
    for i in range(8):
        a(f'v_cvt_pk_bf16_f32 v{P+i}, v{S+2*i}, v{S+2*i+1}')
    allreduce_rows('v_add_f32', 'v152', 'v6', 'v7')
    mk_tags()
    stamp(3)
    issue_to(pv0_at)
    a(f's_waitcnt vmcnt({pv0_at-8})')
    for m in range(8):
        e, o = m >> 1, m & 1
        tb = T + 4 * (m & 1)
        sel = 's57' if o else 's56'
        for pr in range(4):
            lo = VV + 4 * (2 * pr) + e
            hi = VV + 4 * (2 * pr + 1) + e
            a(f'v_perm_b32 v{tb+pr}, v{hi}, v{lo}, {sel}')
        nop(2)
        a(f'v_mfma_f32_16x16x32_bf16 v[{X+4*m}:{X+4*m+3}], v[{P}:{P+3}], v[{tb}:{tb+3}], 0')
    issue_to(16)
    lds_wait(8, 'L_bm', 'v149', 'v150', 's51', 1, cmp='lt', val=8)
    a('v_lshrrev_b32 v6, 2, v3\nv_lshlrev_b32 v6, 5, v6')
    a(f'v_add_u32 v7, {LDS_MX}, v6')
    a(f'ds_read_b128 v[{S}:{S+3}], v7')
    a(f'ds_read_b128 v[{S+4}:{S+7}], v7 offset:16')
    a('s_waitcnt lgkmcnt(0)')
    a(f'v_max3_f32 v5, v{S}, v{S+1}, v{S+2}')
    a(f'v_max3_f32 v5, v5, v{S+3}, v{S+4}')
    a(f'v_max3_f32 v5, v5, v{S+5}, v{S+6}')
    a(f'v_max_f32 v5, v5, v{S+7}')
    a('v_and_b32 v5, 0xfffff000, v5')
    a('v_sub_f32 v155, v151, v5')
    a('v_exp_f32 v155, v155')
    a(f'v_mul_f32 v{T}, 0.125, v5'.replace('0.125', '0x3e000000'))
    a(f'v_mov_b32 v{T+2}, 0\nv_mov_b32 v{T+3}, 0')
    a(f'v_mul_f32 v{T+1}, v152, v155')
    a('v_lshrrev_b32 v6, 2, v3\nv_lshlrev_b32 v6, 4, v6')
    a('s_add_u32 s53, s49, 2048')
    a('v_add_u32 v7, s53, v6')
    a('v_cmp_eq_u32 vcc, 0, v148')
    a('s_and_saveexec_b64 s[54:55], vcc')
    a(f'ds_write_b128 v7, v[{T}:{T+3}]')
    a('s_mov_b64 exec, s[54:55]')
    a(f'v_lshlrev_b32 v7, 5, v2\nv_add_u32 v7, {LDS_MX}, v7')
    a('s_lshl_b32 s53, s30, 2')
    a('v_add_u32 v6, s53, v7')
    a(f'ds_read_b128 v[{S}:{S+3}], v7')
    a(f'ds_read_b128 v[{S+4}:{S+7}], v7 offset:16')
    a(f'ds_read_b32 v155, v6')
    a('s_waitcnt lgkmcnt(0)')
    a(f'v_max3_f32 v5, v{S}, v{S+1}, v{S+2}')
    a(f'v_max3_f32 v5, v5, v{S+3}, v{S+4}')
    a(f'v_max3_f32 v5, v5, v{S+5}, v{S+6}')
    a(f'v_max_f32 v5, v5, v{S+7}')
    a('v_and_b32 v5, 0xfffff000, v5')
    a('v_sub_f32 v155, v155, v5')
    a('v_exp_f32 v155, v155')
    stamp(4)
    for pr in range(4):
        a(f's_waitcnt vmcnt({6-2*pr})')
        if pr == 3: stamp(5)
        order = list(range(8))
        for m in order:
            e, o = m >> 1, m & 1
            sel = 's57' if o else 's56'
            lo = VV + 4 * (8 + 2 * pr) + e
            hi = VV + 4 * (8 + 2 * pr + 1) + e
            a(f'v_perm_b32 v{VV+4*m+pr}, v{hi}, v{lo}, {sel}')
            if pr == 3 and m >= 2:
                mm = m - 2
                a(f'v_mfma_f32_16x16x32_bf16 v[{X+4*mm}:{X+4*mm+3}], v[{P+4}:{P+7}], v[{VV+4*mm}:{VV+4*mm+3}], v[{X+4*mm}:{X+4*mm+3}]')
    nop(1)
    for mm in (6, 7):
        a(f'v_mfma_f32_16x16x32_bf16 v[{X+4*mm}:{X+4*mm+3}], v[{P+4}:{P+7}], v[{VV+4*mm}:{VV+4*mm+3}], v[{X+4*mm}:{X+4*mm+3}]')
    nop(4)
    for m in range(8):
        a(f'v_mul_f32 v{S+m}, v{X+4*m}, v155')
        if m == 5: nop(4)
    a(f'ds_write_b128 v154, v[{S}:{S+3}]')
    a(f'ds_write_b128 v154, v[{S+4}:{S+7}] offset:16')
    a('s_waitcnt lgkmcnt(0)')
    a('s_barrier')
    stamp(6)
    a('s_cmp_ge_u32 s30, 4')
    a('s_cbranch_scc1 L_bpub_done')
    a('v_add_u32 v6, 0x10000, v156')
    for w in range(4):
        a(f'ds_read_b128 v[{X+4*w}:{X+4*w+3}], v156 offset:{w*16384}')
    for w in range(4):
        a(f'ds_read_b128 v[{X+16+4*w}:{X+16+4*w+3}], v6 offset:{w*16384}')
    a('s_waitcnt lgkmcnt(4)')
    for i in range(0, 4, 2):
        a(f'v_pk_add_f32 v[{X+i}:{X+i+1}], v[{X+i}:{X+i+1}], v[{X+4+i}:{X+4+i+1}]')
        a(f'v_pk_add_f32 v[{X+8+i}:{X+8+i+1}], v[{X+8+i}:{X+8+i+1}], v[{X+12+i}:{X+12+i+1}]')
    a('s_waitcnt lgkmcnt(0)')
    for i in range(0, 4, 2):
        a(f'v_pk_add_f32 v[{X+16+i}:{X+16+i+1}], v[{X+16+i}:{X+16+i+1}], v[{X+20+i}:{X+20+i+1}]')
        a(f'v_pk_add_f32 v[{X+24+i}:{X+24+i+1}], v[{X+24+i}:{X+24+i+1}], v[{X+28+i}:{X+28+i+1}]')
    for i in range(0, 4, 2):
        a(f'v_pk_add_f32 v[{X+i}:{X+i+1}], v[{X+i}:{X+i+1}], v[{X+8+i}:{X+8+i+1}]')
        a(f'v_pk_add_f32 v[{X+16+i}:{X+16+i+1}], v[{X+16+i}:{X+16+i+1}], v[{X+24+i}:{X+24+i+1}]')
    for i in range(0, 4, 2):
        a(f'v_pk_add_f32 v[{X+i}:{X+i+1}], v[{X+i}:{X+i+1}], v[{X+16+i}:{X+16+i+1}]')
    for i in range(4):
        a(f'v_and_or_b32 v{X+i}, v{X+i}, v153, {TF[i]}')
    a(f'buffer_store_dwordx4 v[{X}:{X+3}], v157, s[36:39], s33 offen sc1')
    a.label('L_bpub_done')
    stamp(7)
    if prof:
        a('s_waitcnt vmcnt(0)')
        stamp(9)
    if stopP: a('s_branch L_fin')
    a('s_cmp_ge_u32 s2, 32')
    a('s_cbranch_scc1 L_fin')
    a(f's_lshl_b32 s58, s30, 12\ns_lshl_b32 s59, s2, 15\ns_add_u32 s58, s58, s59\ns_add_u32 s58, s58, {WS_Y}')
    a('s_mov_b32 s68, s24\ns_mov_b32 s69, s25\ns_mov_b32 s70, 2048\ns_mov_b32 s71, 0x20000')
    a('s_lshl_b32 s59, s2, 6')
    a('v_and_b32 v8, 31, v0\nv_lshlrev_b32 v8, 1, v8')
    lds_wait(20, 'L_by', 'v6', 'v7', 's51', 1)
    stamp(12)
    a('s_cmp_eq_u32 s30, 0')
    a('s_cbranch_scc0 L_l2')
    a('s_mov_b32 s60, s4\ns_mov_b32 s61, s5\ns_mov_b32 s62, 2048\ns_mov_b32 s63, 0x20000')
    a('s_mov_b32 s64, s22\ns_mov_b32 s65, s23\ns_mov_b32 s66, 1024\ns_mov_b32 s67, 0x20000')
    a('s_and_b32 s72, s59, 1023')
    a(f'buffer_load_ushort v9, v8, s[60:63], s59 offen')
    a(f'buffer_load_ushort v10, v8, s[64:67], s72 offen')
    a.label('L_l2')
    for t in range(4):
        a(f'buffer_load_dwordx4 v[{X+4*t}:{X+4*t+3}], v4, s[36:39], s58 offen offset:{t*1024} sc1')
    a('s_waitcnt vmcnt(0)')
    for t in range(4):
        for i in range(4):
            a(f'v_xor_b32 v{X+4*t+i}, {TF[i]}, v{X+4*t+i}')
    a(f'v_or3_b32 v7, v{X}, v{X+1}, v{X+2}')
    for i in range(3, 15, 2):
        a(f'v_or3_b32 v7, v7, v{X+i}, v{X+i+1}')
    a(f'v_or_b32 v7, v7, v{X+15}')
    a('v_and_b32 v7, 0xfff, v7')
    a('v_cmp_ne_u32 vcc, 0, v7')
    a('s_cbranch_vccz L_l2_done')
    if sleep_l2: a(f's_sleep {sleep_l2}')
    a('s_branch L_l2')
    a.label('L_l2_done')
    stamp(10)
    for i in range(4):
        a(f'v_add_f32 v{X+i}, v{X+i}, v{X+4+i}')
        a(f'v_add_f32 v{X+8+i}, v{X+8+i}, v{X+12+i}')
    for i in range(4):
        a(f'v_add_f32 v{X+i}, v{X+i}, v{X+8+i}')
    nop(1)
    for i in range(4):
        dpp('v_add_f32', f'v{X+i}', f'v{X+i}', f'v{X+i}', 'row_ror:8')
    a(f's_lshl_b32 s73, s30, 7\ns_add_u32 s73, s73, {LDS_L2}')
    a(f'v_permlane16_swap_b32 v{X}, v{X+1}')
    a(f'v_permlane16_swap_b32 v{X+2}, v{X+3}')
    a('v_and_b32 v6, 7, v0\nv_lshlrev_b32 v6, 4, v6')
    a(f'v_add_f32 v{X}, v{X}, v{X+1}')
    a(f'v_add_f32 v{X+2}, v{X+2}, v{X+3}')
    a('v_lshl_add_u32 v6, v2, 2, v6')
    nop(1)
    a(f'v_permlane32_swap_b32 v{X}, v{X+2}')
    a('v_add_u32 v6, s73, v6')
    a(f'v_add_f32 v{X}, v{X}, v{X+2}')
    a('v_and_b32 v7, 8, v0')
    a('v_cmp_eq_u32 vcc, 0, v7')
    a('s_and_saveexec_b64 s[54:55], vcc')
    a(f'ds_write_b32 v6, v{X}')
    a('s_mov_b64 exec, s[54:55]')
    a('s_waitcnt lgkmcnt(0)')
    a('s_barrier')
    stamp(11)
    a('s_cmp_eq_u32 s30, 0')
    a('s_cbranch_scc0 L_fin')
    a('v_and_b32 v6, 31, v0\nv_lshlrev_b32 v6, 2, v6')
    a(f'v_add_u32 v6, {LDS_L2}, v6')
    for w in range(8):
        a(f'ds_read_b32 v{X+w}, v6 offset:{w*128}')
    a('v_lshlrev_b32 v9, 16, v9\nv_lshlrev_b32 v10, 16, v10')
    a('v_add_f32 v9, v9, v10')
    a('s_waitcnt lgkmcnt(0)')
    a(f'v_add_f32 v{X}, v{X}, v{X+1}\nv_add_f32 v{X+2}, v{X+2}, v{X+3}\nv_add_f32 v{X+4}, v{X+4}, v{X+5}\nv_add_f32 v{X+6}, v{X+6}, v{X+7}')
    a(f'v_add_f32 v{X}, v{X}, v{X+2}\nv_add_f32 v{X+4}, v{X+4}, v{X+6}')
    a(f'v_add_f32 v{X}, v{X}, v{X+4}')
    a(f'v_add_f32 v{X}, v{X}, v9')
    a(f'v_cvt_pk_bf16_f32 v{X}, v{X}, v{X}')
    a('v_cmp_gt_u32 vcc, 32, v0')
    a('s_and_saveexec_b64 s[54:55], vcc')
    a(f'buffer_store_short v{X}, v8, s[68:71], s59 offen')
    a('s_mov_b64 exec, s[54:55]')
    stamp(8)
    a('s_cmp_eq_u32 s2, 0')
    a('s_cbranch_scc0 L_fin')
    a(f'v_mov_b32 v{X+2}, s82\nv_mov_b32 v{X+3}, s83\nv_mov_b32 v6, {WS_EPOCH}')
    a('v_cmp_eq_u32 vcc, 0, v0')
    a('s_and_saveexec_b64 s[54:55], vcc')
    a(f'buffer_store_dwordx2 v[{X+2}:{X+3}], v6, s[36:39], 0 offen')
    a('s_mov_b64 exec, s[54:55]')
    a('s_branch L_fin')

    a.label('L_aux')
    a('s_sub_u32 s30, s30, 8')
    a('s_setprio 3')
    a('s_mov_b32 s40, s4\ns_mov_b32 s41, s5\ns_mov_b32 s42, 2048\ns_mov_b32 s43, 0x20000')
    a('s_mov_b32 s44, s10\ns_mov_b32 s45, s11\ns_mov_b32 s46, 0x400000\ns_mov_b32 s47, 0x20000')
    a(f's_mov_b32 s48, s16\ns_mov_b32 s49, s17\ns_mov_b32 s50, {512*1792*2}\ns_mov_b32 s51, 0x20000')
    a('s_mov_b32 s52, s12\ns_mov_b32 s53, s13\ns_mov_b32 s54, 0x400000\ns_mov_b32 s55, 0x20000')
    a(f's_mov_b32 s56, s20\ns_mov_b32 s57, s21\ns_mov_b32 s58, {512*1792*2}\ns_mov_b32 s59, 0x20000')
    a('s_mov_b32 s60, s18\ns_mov_b32 s61, s19\ns_mov_b32 s62, 3584\ns_mov_b32 s63, 0x20000')
    a('s_mul_i32 s68, s35, 28\ns_add_u32 s68, s68, s32')
    a('s_cmp_eq_u32 s30, 0\ns_cbranch_scc1 L_a0')
    a('s_cmp_eq_u32 s30, 1\ns_cbranch_scc1 L_a1')
    a('s_cmp_eq_u32 s30, 2\ns_cbranch_scc1 L_a2')
    a(f'v_mov_b32 v5, {LDS_FL}\nv_lshl_add_u32 v5, v0, 2, v5\nv_mov_b32 v6, 0')
    a('v_cmp_gt_u32 vcc, 8, v0')
    a('s_and_saveexec_b64 s[70:71], vcc')
    a('ds_write_b32 v5, v6')
    a('s_mov_b64 exec, s[70:71]')
    a('s_waitcnt lgkmcnt(0)')
    a('s_barrier')
    load_epoch()
    mk_tags(True)
    a('s_getreg_b32 s72, hwreg(HW_REG_XCC_ID)')
    a('v_mov_b32 v8, s72\nv_mov_b32 v9, 0\nv_mov_b32 v10, s82\nv_mov_b32 v11, s83')
    a(f's_lshl_b32 s72, s2, 4\ns_add_u32 s72, s72, {WS_XT}')
    a('v_mov_b32 v5, 0')
    a('v_cmp_eq_u32 vcc, 0, v0')
    a('s_and_saveexec_b64 s[70:71], vcc')
    a('buffer_store_dwordx4 v[8:11], v5, s[36:39], s72 offen sc1')
    a('s_mov_b64 exec, s[70:71]')
    a('s_branch L_acommon')

    def layernorm():
        for b in range(2):
            src = 8 + 4 * b
            F = 16
            for i in range(4):
                a(f'v_lshlrev_b32 v{F+2*i}, 16, v{src+i}')
                a(f'v_and_b32 v{F+2*i+1}, 0xffff0000, v{src+i}')
            a(f'v_add_f32 v24, v{F}, v{F+1}')
            for i in range(2, 8):
                a(f'v_add_f32 v24, v24, v{F+i}')
            allreduce64_add('v24', 'v26', 'v27')
            a(f'v_mul_f32 v24, {f32bits(1.0/512):#x}, v24')
            a('v_mov_b32 v25, 0')
            for i in range(8):
                a(f'v_sub_f32 v26, v{F+i}, v24')
                a('v_fmac_f32 v25, v26, v26')
            allreduce64_add('v25', 'v26', 'v27')
            a(f'v_mul_f32 v25, {f32bits(1.0/512):#x}, v25')
            a('v_cvt_pk_bf16_f32 v26, v24, v25')
            a('v_lshlrev_b32 v24, 16, v26')
            a('v_and_b32 v25, 0xffff0000, v26')
            a(f'v_add_f32 v25, {f32bits(1e-5):#x}, v25')
            a('v_cvt_pk_bf16_f32 v25, v25, v25')
            a('v_and_b32 v25, 0xffff0000, v25')
            a('v_sqrt_f32 v25, v25')
            nop(1)
            a('v_cvt_pk_bf16_f32 v25, v25, v25')
            a('v_and_b32 v25, 0xffff0000, v25')
            a('v_rcp_f32 v28, v25')
            for i in range(8):
                a(f'v_sub_f32 v{F+i}, v{F+i}, v24')
            for i in range(4):
                a(f'v_cvt_pk_bf16_f32 v26, v{F+2*i}, v{F+2*i+1}')
                a(f'v_lshlrev_b32 v{F+2*i}, 16, v26')
                a(f'v_and_b32 v{F+2*i+1}, 0xffff0000, v26')
            for i in range(8):
                a(f'v_mul_f32 v26, v{F+i}, v28')
                a(f'v_fma_f32 v27, -v26, v25, v{F+i}')
                a(f'v_fma_f32 v{F+i}, v27, v28, v26')
            for i in range(4):
                a(f'v_cvt_pk_bf16_f32 v{src+i}, v{F+2*i}, v{F+2*i+1}')

    def proj(tile_base, xn_addr_s, nks):
        a('v_lshrrev_b32 v5, 2, v3\nv_lshl_add_u32 v5, v2, 3, v5\nv_lshlrev_b32 v5, 7, v5\nv_and_b32 v6, 3, v3\nv_lshl_add_u32 v5, v6, 3, v5')
        a(f'v_add_u32 v5, {tile_base}, v5')
        a('v_lshrrev_b32 v30, 3, v3')
        a('v_lshlrev_b32 v30, 10, v30')
        a('v_lshl_add_u32 v30, v2, 4, v30')
        a(f'v_add_u32 v30, {xn_addr_s}, v30')
        for ks in range(nks):
            a(f'ds_read_b128 v[48:51], v30 offset:{ks*64}')
            for ct in range(4):
                a(f'ds_read_b64_tr_b16 v[{32+4*ct}:{33+4*ct}], v5 offset:{ks*4096+ct*32}')
                a(f'ds_read_b64_tr_b16 v[{34+4*ct}:{35+4*ct}], v5 offset:{ks*4096+ct*32+512}')
            for ct in range(4):
                a(f's_waitcnt lgkmcnt({2*(3-ct)})')
                c = '0' if ks == 0 else f'v[{64+4*ct}:{67+4*ct}]'
                a(f'v_mfma_f32_16x16x32_bf16 v[{64+4*ct}:{67+4*ct}], v[{32+4*ct}:{35+4*ct}], v[48:51], {c}')
        nop(8); nop(2)
        a('v_and_b32 v6, 3, v3')
        for i in range(4): a(f'v_mov_b32 v{16+i}, v{64+i}')
        for ct in range(1, 4):
            a(f'v_cmp_eq_u32 vcc, {ct}, v6')
            nop(2)
            for i in range(4): a(f'v_cndmask_b32 v{16+i}, v{16+i}, v{64+4*ct+i}, vcc')
        a('v_mov_b32 v20, 0xffffff00')
        for i in range(4): a(f'v_add_u32 v{16+i}, 0x80, v{16+i}')
        for i in range(4): a(f'v_and_or_b32 v{16+i}, v{16+i}, v20, s{64+i}')
        a('v_lshlrev_b32 v7, 6, v6\nv_lshl_add_u32 v7, v2, 4, v7')
        a('v_and_b32 v6, 4, v3')
        a('v_cmp_eq_u32 vcc, 0, v6')

    a.label('L_a0')
    a('buffer_load_dwordx4 v[8:11], v4, s[40:43], 0 offen')
    a('buffer_load_dwordx4 v[12:15], v4, s[40:43], 0 offen offset:1024')
    a('v_lshrrev_b32 v5, 3, v0\nv_lshlrev_b32 v5, 13, v5\nv_and_b32 v6, 7, v0\nv_lshl_add_u32 v5, v6, 4, v5')
    a('s_lshl_b32 s72, s35, 10\ns_and_b32 s73, s32, 7\ns_lshl_b32 s73, s73, 7\ns_add_u32 s72, s72, s73')
    a('s_lshr_b32 s73, s32, 3\ns_lshl_b32 s73, s73, 20\ns_add_u32 s72, s72, s73')
    for i in range(16):
        a(f's_mov_b32 m0, {LDS_WQ + i*1024}')
        if 'q' not in now: a(f'buffer_load_dwordx4 v5, s[44:47], s72 offen{NT} lds')
        if i < 15: a(f's_add_u32 s72, s72, {8*8192}')
    a('s_barrier')
    load_epoch()
    a('s_waitcnt vmcnt(16)' if 'q' not in now else 's_waitcnt vmcnt(0)')
    mk_tags(True)
    stamp(1)
    layernorm()
    a(f'v_add_u32 v5, {LDS_XN0}, v4')
    a('ds_write_b128 v5, v[8:11]')
    a('ds_write_b128 v5, v[12:15] offset:1024')
    a('s_waitcnt vmcnt(0) lgkmcnt(0)')
    stamp(2)
    a(f's_lshr_b32 s73, s32, 3\ns_lshl_b32 s73, s73, 8\ns_add_u32 s73, s73, {LDS_XN0}')
    proj(LDS_WQ, 's73', 4)
    a('v_lshrrev_b32 v6, 3, v3\nv_lshl_add_u32 v7, v6, 13, v7')
    a(f's_lshl_b32 s69, s35, 14\ns_lshr_b32 s72, s32, 3\ns_lshl_b32 s72, s72, 11\ns_add_u32 s69, s69, s72\ns_and_b32 s72, s32, 7\ns_lshl_b32 s72, s72, 8\ns_add_u32 s69, s69, s72\ns_add_u32 s69, s69, {WS_QP}')
    a('s_and_saveexec_b64 s[70:71], vcc')
    a('buffer_store_dwordx4 v[16:19], v7, s[36:39], s69 offen sc1')
    a('s_mov_b64 exec, s[70:71]')
    lds_set(12, 'v5', 'v6')
    stamp(3)
    a('s_branch L_acommon')

    a.label('L_a1')
    a('s_barrier')
    load_epoch()
    mk_tags(True)
    lds_wait(12, 'L_a1_p', 'v5', 'v6', 's75', 4)
    stamp(1)
    a(f's_lshl_b32 s72, s89, 14\ns_lshl_b32 s73, s88, 13\ns_add_u32 s72, s72, s73\ns_add_u32 s72, s72, {WS_QP}')
    a('s_add_u32 s73, s72, 4096')
    if noq: a('s_branch L_a1_qd')
    if q_delay: a(f's_sleep {q_delay}')
    a.label('L_a1_q')
    for d in range(4):
        sr = 's72' if d < 2 else 's73'
        a(f'buffer_load_dwordx4 v[{8+8*d}:{11+8*d}], v4, s[36:39], {sr} offen offset:{(d&1)*2048} sc1')
        a(f'buffer_load_dwordx4 v[{12+8*d}:{15+8*d}], v4, s[36:39], {sr} offen offset:{(d&1)*2048+1024} sc1')
    a('s_waitcnt vmcnt(0)')
    for r in range(8, 40):
        a(f'v_xor_b32 v{r}, s{64+(r&3)}, v{r}')
    a('v_or3_b32 v6, v8, v9, v10')
    for r in range(11, 39, 2):
        a(f'v_or3_b32 v6, v6, v{r}, v{r+1}')
    a('v_or_b32 v6, v6, v39')
    a('v_and_b32 v6, 0xff, v6')
    a('v_cmp_ne_u32 vcc, 0, v6')
    a('s_cbranch_vccz L_a1_qd')
    if sleep_q: a(f's_sleep {sleep_q}')
    a('s_branch L_a1_q')
    a.label('L_a1_qd')
    for r in range(0, 8, 2):
        a(f'v_pk_add_f32 v[{8+r}:{9+r}], v[{8+r}:{9+r}], v[{16+r}:{17+r}]')
        a(f'v_pk_add_f32 v[{24+r}:{25+r}], v[{24+r}:{25+r}], v[{32+r}:{33+r}]')
    for r in range(0, 8, 2):
        a(f'v_pk_add_f32 v[{8+r}:{9+r}], v[{8+r}:{9+r}], v[{24+r}:{25+r}]')
    a('v_cvt_pk_bf16_f32 v16, v8, v9\nv_cvt_pk_bf16_f32 v17, v10, v11\nv_cvt_pk_bf16_f32 v18, v12, v13\nv_cvt_pk_bf16_f32 v19, v14, v15')
    a(f'v_lshlrev_b32 v5, 3, v0\nv_add_u32 v5, {LDS_Q}, v5')
    a('ds_write_b64 v5, v[16:17]')
    a('ds_write_b64 v5, v[18:19] offset:512')
    a('s_waitcnt lgkmcnt(0)')
    lds_set(0, 'v5', 'v6')
    stamp(2)
    a('s_branch L_acommon')

    a.label('L_a2')
    a('s_cmp_ge_u32 s32, 28')
    a('s_cbranch_scc1 L_a2_skip')
    a('buffer_load_dwordx4 v[8:11], v4, s[40:43], 0 offen')
    a('buffer_load_dwordx4 v[12:15], v4, s[40:43], 0 offen offset:1024')
    a('s_mov_b32 s72, 3584\nv_lshrrev_b32 v5, 3, v0\nv_mul_lo_u32 v5, v5, s72\nv_and_b32 v6, 7, v0\nv_lshl_add_u32 v5, v6, 4, v5')
    a(f's_mul_i32 s72, s35, {64*3584}\ns_lshl_b32 s73, s32, 7\ns_add_u32 s72, s72, s73')
    for i in range(8):
        a(f's_mov_b32 m0, {LDS_W1 + i*1024}')
        if '1' not in now: a(f'buffer_load_dwordx4 v5, s[48:51], s72 offen{NT} lds')
        if i < 7: a(f's_add_u32 s72, s72, {8*3584}')
    a('v_and_b32 v6, 1, v2\nv_lshlrev_b32 v6, 3, v6')
    a('s_lshl_b32 s72, s68, 4')
    a('buffer_load_dwordx2 v[80:81], v6, s[60:63], s72 offen')
    a('s_barrier')
    load_epoch()
    a('s_waitcnt vmcnt(9)' if '1' not in now else 's_waitcnt vmcnt(1)')
    mk_tags(True)
    layernorm()
    a(f'v_add_u32 v5, {LDS_XN2}, v4')
    a('ds_write_b128 v5, v[8:11]')
    a('ds_write_b128 v5, v[12:15] offset:1024')
    a('s_waitcnt vmcnt(0) lgkmcnt(0)')
    a(f's_lshl_b32 s73, s35, 7\ns_add_u32 s73, s73, {LDS_XN2}')
    proj(LDS_W1, 's73', 2)
    a('v_lshrrev_b32 v6, 3, v3\nv_lshl_add_u32 v7, v6, 8, v7')
    a(f's_lshl_b32 s69, s32, 12\ns_lshl_b32 s72, s35, 9\ns_add_u32 s69, s69, s72\ns_add_u32 s69, s69, {WS_HP}')
    a('s_and_saveexec_b64 s[70:71], vcc')
    a('buffer_store_dwordx4 v[16:19], v7, s[36:39], s69 offen sc1')
    a('s_mov_b64 exec, s[70:71]')
    a('v_and_b32 v5, 7, v3\nv_lshlrev_b32 v5, 9, v5\nv_lshrrev_b32 v6, 3, v3\nv_lshl_add_u32 v5, v6, 8, v5\nv_and_b32 v6, 1, v2\nv_lshl_add_u32 v5, v6, 4, v5')
    a(f's_lshr_b32 s72, s68, 3\ns_lshl_b32 s72, s72, 12\ns_and_b32 s73, s68, 7\ns_lshl_b32 s73, s73, 5\ns_add_u32 s72, s72, s73\ns_add_u32 s72, s72, {WS_HP}')
    a(f's_sleep {h_delay}')
    a.label('L_a2_h')
    a('buffer_load_dwordx4 v[64:67], v5, s[36:39], s72 offen sc1')
    a('s_waitcnt vmcnt(0)')
    for i in range(4): a(f'v_xor_b32 v{64+i}, s{64+i}, v{64+i}')
    a('v_or3_b32 v6, v64, v65, v66\nv_or_b32 v6, v6, v67\nv_and_b32 v6, 0xff, v6')
    a('v_cmp_ne_u32 vcc, 0, v6')
    a('s_cbranch_vccz L_a2_hd')
    a('s_sleep 8')
    a('s_branch L_a2_h')
    a.label('L_a2_hd')
    for ctl in ['quad_perm:[1,0,3,2]', 'quad_perm:[2,3,0,1]', 'row_half_mirror']:
        nop(1)
        for i in range(4):
            dpp('v_add_f32', f'v{64+i}', f'v{64+i}', f'v{64+i}', ctl)
    nop(1)
    a('v_cvt_pk_bf16_f32 v68, v64, v65\nv_cvt_pk_bf16_f32 v69, v66, v67')
    a('v_lshlrev_b32 v64, 16, v68\nv_and_b32 v65, 0xffff0000, v68\nv_lshlrev_b32 v66, 16, v69\nv_and_b32 v67, 0xffff0000, v69')
    a('v_lshlrev_b32 v72, 16, v80\nv_and_b32 v73, 0xffff0000, v80\nv_lshlrev_b32 v74, 16, v81\nv_and_b32 v75, 0xffff0000, v81')
    for i in range(4):
        a(f'v_add_f32 v{64+i}, v{64+i}, v{72+i}')
    a('v_cvt_pk_bf16_f32 v68, v64, v65\nv_cvt_pk_bf16_f32 v69, v66, v67')
    a('v_lshlrev_b32 v64, 16, v68\nv_and_b32 v65, 0xffff0000, v68\nv_lshlrev_b32 v66, 16, v69\nv_and_b32 v67, 0xffff0000, v69')
    kk = -2.0 * math.sqrt(2.0 / math.pi) * math.log2(math.e)
    a(f's_mov_b32 s72, {f32bits(0.044715):#x}\ns_mov_b32 s73, {f32bits(kk):#x}')
    for i in range(4):
        x = f'v{64+i}'; t = f'v{72+i}'
        a(f'v_mul_f32 {t}, {x}, {x}')
        a(f'v_mul_f32 {t}, {t}, {x}')
        a(f'v_fma_f32 {t}, {t}, s72, {x}')
        a(f'v_mul_f32 {t}, s73, {t}')
        a(f'v_exp_f32 {t}, {t}')
        nop(1)
        a(f'v_add_f32 {t}, 1.0, {t}')
        a(f'v_rcp_f32 {t}, {t}')
        nop(1)
        a(f'v_mul_f32 {x}, {x}, {t}')
    a('v_cvt_pk_bf16_f32 v68, v64, v65\nv_cvt_pk_bf16_f32 v69, v66, v67')
    a('v_cmp_gt_u32 vcc, 2, v2')
    nop(2)
    a('v_cndmask_b32 v68, 0, v68, vcc\nv_cndmask_b32 v69, 0, v69, vcc')
    a(f'v_lshlrev_b32 v5, 3, v0\nv_add_u32 v5, {LDS_H}, v5')
    a('ds_write_b64 v5, v[68:69]')
    a('s_waitcnt lgkmcnt(0)')
    lds_set(4, 'v5', 'v6')
    a('s_branch L_acommon')
    a.label('L_a2_skip')
    a('s_barrier')
    load_epoch()
    mk_tags(True)

    a.label('L_acommon')
    LO = 76; L2 = 92; TO = 108; T2 = 124; ACC = 8
    if auxexit:
        a('s_add_u32 s30, s30, 8')
        a('s_branch L_fin')
    if wtrig > 0: lds_wait(24, 'L_aw', 'v5', 'v6', 's75', 8)
    a('v_lshlrev_b32 v5, 12, v2\nv_lshl_add_u32 v5, v3, 4, v5')
    a('s_lshl_b32 s72, s35, 9\ns_lshl_b32 s73, s32, 4\ns_add_u32 s72, s72, s73\ns_lshl_b32 s72, s72, 10')
    a('s_lshl_b32 s73, s30, 8\ns_add_u32 s72, s72, s73')
    for i in range(4):
        if 'o' not in now: a(f'buffer_load_dwordx4 v[{LO+4*i}:{LO+4*i+3}], v5, s[52:55], s72 offen offset:{i*1024}{NT}')
    a('s_mov_b32 s76, 0x05040100\ns_mov_b32 s77, 0x07060302')
    a('s_cmp_ge_u32 s32, 28')
    a('s_cbranch_scc1 L_nomlp')
    a('v_and_b32 v6, 1, v2\nv_lshlrev_b32 v6, 12, v6\nv_lshl_add_u32 v6, v3, 4, v6')
    a('s_lshl_b32 s74, s68, 13\ns_add_u32 s74, s74, s73')
    for i in range(4):
        if '2' not in now: a(f'buffer_load_dwordx4 v[{L2+4*i}:{L2+4*i+3}], v6, s[56:59], s74 offen offset:{i*1024}{NT}')
    lds_wait(4, 'L_ah', 'v5', 'v6', 's75', 4)
    a(f'v_lshlrev_b32 v5, 3, v0\nv_add_u32 v5, {LDS_H}, v5')
    a('ds_read_b64 v[40:41], v5')
    a('s_waitcnt vmcnt(0) lgkmcnt(0)')
    for m in range(8):
        e, o = m >> 1, m & 1
        sel = 's77' if o else 's76'
        a(f'v_perm_b32 v{T2+2*m}, v{L2+4+e}, v{L2+e}, {sel}')
        a(f'v_perm_b32 v{T2+2*m+1}, v{L2+12+e}, v{L2+8+e}, {sel}')
    nop(2)
    for m in range(8):
        a(f'v_mfma_f32_16x16x16_bf16 v[{ACC+4*m}:{ACC+4*m+3}], v[40:41], v[{T2+2*m}:{T2+2*m+1}], 0')
    a('s_branch L_mlpdone')
    a.label('L_nomlp')
    for i in range(32):
        a(f'v_mov_b32 v{ACC+i}, 0')
    a('s_waitcnt vmcnt(0)')
    a.label('L_mlpdone')
    for m in range(8):
        e, o = m >> 1, m & 1
        sel = 's77' if o else 's76'
        a(f'v_perm_b32 v{TO+2*m}, v{LO+4+e}, v{LO+e}, {sel}')
        a(f'v_perm_b32 v{TO+2*m+1}, v{LO+12+e}, v{LO+8+e}, {sel}')
    a('v_lshrrev_b32 v5, 3, v3\nv_lshlrev_b32 v5, 4, v5\nv_and_b32 v6, 7, v3\nv_add_u32 v5, v5, v6')
    a('v_lshlrev_b32 v43, 7, v5')
    a('v_lshl_add_u32 v42, v2, 4, v43')
    a(f's_lshl_b32 s72, s35, 17\ns_add_u32 s72, s72, {WS_SLOT}')
    a('s_lshl_b32 s74, s32, 12\ns_add_u32 s74, s74, s72')
    a(f's_add_u32 s78, s74, {8*128}')
    a('v_and_b32 v6, 1, v2')
    a('v_lshrrev_b32 v5, 1, v2\nv_lshlrev_b32 v5, 4, v5\nv_lshrrev_b32 v7, 2, v3\nv_add_u32 v5, v5, v7')
    a('s_lshl_b32 s72, s30, 2')
    a('v_add_u32 v5, s72, v5')
    a('v_add_u32 v7, s2, v5\nv_and_b32 v7, 255, v7\nv_lshlrev_b32 v7, 7, v7')
    a('v_lshl_add_u32 v5, v5, 15, v7')
    a('v_and_b32 v7, 3, v3\nv_lshl_add_u32 v5, v7, 5, v5\nv_lshl_add_u32 v60, v6, 4, v5')
    a(f's_mov_b32 s72, {WS_Y}')
    a('v_lshrrev_b32 v5, 15, v60\nv_lshlrev_b32 v5, 4, v5')
    a(f's_mov_b32 s73, {WS_XT}')
    a.label('L_xt')
    a('buffer_load_dwordx4 v[44:47], v5, s[36:39], s73 offen sc1')
    a('s_waitcnt vmcnt(0)')
    a('v_xor_b32 v46, s82, v46\nv_xor_b32 v47, s83, v47\nv_or_b32 v46, v46, v47')
    a('v_cmp_ne_u32 vcc, 0, v46')
    a('s_cbranch_vccz L_xt_d')
    a('s_sleep 8')
    a('s_branch L_xt')
    a.label('L_xt_d')
    a('s_getreg_b32 s73, hwreg(HW_REG_XCC_ID)')
    a('v_cmp_eq_u32 s[98:99], s73, v44')
    a('v_mov_b32 v61, 0xfffff000')
    a(f'v_lshlrev_b32 v62, 3, v0\nv_add_u32 v62, {LDS_OA}, v62')
    a(f'v_mov_b32 v63, {LDS_FL+16}')
    stamp(4)
    a('s_barrier')
    stamp(5)
    if stopP:
        a('s_add_u32 s30, s30, 8')
        a('s_branch L_fin')
    a('s_cmp_eq_u32 s30, 0')
    a('s_cbranch_scc0 L_l1_wait')
    if prof: a('s_mov_b32 s94, 0')
    a.label('L_l1')
    if prof: a('s_add_u32 s94, s94, 1')
    a('buffer_load_dwordx4 v[44:47], v42, s[36:39], s74 offen sc1')
    a('buffer_load_dwordx4 v[48:51], v42, s[36:39], s78 offen sc1')
    a('buffer_load_dwordx4 v[52:55], v43, s[36:39], s74 offen offset:64 sc1')
    a('buffer_load_dwordx4 v[64:67], v43, s[36:39], s78 offen offset:64 sc1')
    a('s_waitcnt vmcnt(0)')
    for i in range(4):
        a(f'v_xor_b32 v{44+i}, {TF[i]}, v{44+i}')
        a(f'v_xor_b32 v{48+i}, {TF[i]}, v{48+i}')
        a(f'v_xor_b32 v{52+i}, {TF[i]}, v{52+i}')
        a(f'v_xor_b32 v{64+i}, {TF[i]}, v{64+i}')
    a('v_or3_b32 v6, v44, v45, v46\nv_or3_b32 v6, v6, v47, v48\nv_or3_b32 v6, v6, v49, v50\nv_or3_b32 v6, v6, v51, v52')
    a('v_or3_b32 v6, v6, v53, v54\nv_or3_b32 v6, v6, v55, v64\nv_or3_b32 v6, v6, v65, v66\nv_or_b32 v6, v6, v67')
    a('v_and_b32 v6, 0xfff, v6')
    a('v_cmp_ne_u32 vcc, 0, v6')
    a('s_cbranch_vccz L_l1_done')
    if sleep_l1: a(f's_sleep {sleep_l1}')
    a('s_branch L_l1')
    a.label('L_l1_done')
    stamp(6)
    if prof: a('v_writelane_b32 v167, s94, 10')
    R8 = ['quad_perm:[1,0,3,2]', 'quad_perm:[2,3,0,1]', 'row_half_mirror']
    a('v_max_f32 v56, v52, v64')
    for ctl in R8:
        nop(2)
        dpp('v_max_f32', 'v56', 'v56', 'v56', ctl)
    a('v_sub_f32 v52, v52, v56\nv_sub_f32 v64, v64, v56')
    a('v_exp_f32 v52, v52\nv_exp_f32 v64, v64')
    nop(1)
    a('v_mul_f32 v57, v52, v53')
    a('v_fmac_f32 v57, v64, v65')
    for i in range(4):
        a(f'v_mul_f32 v{44+i}, v{44+i}, v52')
        a(f'v_fmac_f32 v{44+i}, v{48+i}, v64')
    for ctl in R8:
        nop(1)
        dpp('v_add_f32', 'v57', 'v57', 'v57', ctl)
        for i in range(4):
            dpp('v_add_f32', f'v{44+i}', f'v{44+i}', f'v{44+i}', ctl)
    nop(1)
    a('v_rcp_f32 v57, v57')
    nop(1)
    for i in range(4):
        a(f'v_mul_f32 v{44+i}, v{44+i}, v57')
    a('v_cvt_pk_bf16_f32 v58, v44, v45\nv_cvt_pk_bf16_f32 v59, v46, v47')
    a('ds_write_b64 v62, v[58:59]')
    a('v_mov_b32 v6, 1')
    a('ds_write_b32 v63, v6')
    a('s_branch L_l1_go')
    a.label('L_l1_wait')
    a('ds_read_b32 v6, v63')
    a('ds_read_b64 v[58:59], v62')
    a('s_waitcnt lgkmcnt(0)')
    a('v_readfirstlane_b32 s75, v6')
    a('s_cmp_eq_u32 s75, 0')
    a('s_cbranch_scc1 L_l1_wait')
    a.label('L_l1_go')
    nop(2)
    for m in range(8):
        a(f'v_mfma_f32_16x16x16_bf16 v[{ACC+4*m}:{ACC+4*m+3}], v[58:59], v[{TO+2*m}:{TO+2*m+1}], v[{ACC+4*m}:{ACC+4*m+3}]')
    a('v_and_b32 v6, 1, v2')
    a('v_cmp_eq_u32 vcc, 1, v6')
    nop(8)
    for i in range(4):
        a(f'v_cndmask_b32 v{44+i}, v{ACC+4*i}, v{ACC+4*(i+4)}, vcc')
    for i in range(4):
        a(f'v_and_or_b32 v{44+i}, v{44+i}, v61, {TF[i]}')
    a('s_andn2_b64 exec, exec, s[98:99]')
    a('buffer_store_dwordx4 v[44:47], v60, s[36:39], s72 offen sc1')
    a('s_mov_b64 exec, s[98:99]')
    a('buffer_store_dwordx4 v[44:47], v60, s[36:39], s72 offen')
    a('s_mov_b64 exec, -1')
    lds_set(20, 'v5', 'v6')
    stamp(7)
    if prof:
        a('s_waitcnt vmcnt(0)')
        stamp(8)
    a('s_add_u32 s30, s30, 8')
    a.label('L_fin')
    if prof:
        a(f's_lshl_b32 s92, s2, 4\ns_add_u32 s92, s92, s30\ns_lshl_b32 s92, s92, 8\ns_add_u32 s92, s92, {WS_PROF}')
        a('v_writelane_b32 v167, s96, 0')
        a('v_lshlrev_b32 v5, 2, v0')
        a('buffer_store_dword v167, v5, s[36:39], s92 offen')
    a.label('L_end')
    return wrap(a.text(), 256, 768, LDS_TOTAL, nvgpr=168, accum=168)

if __name__ == '__main__':
    st = dict(nthr=32, q_delay=60, h_delay=80, sleep_q=16, wtrig=16)
    open('k12.s', 'w').write(gen(**st))
    open('k12p.s', 'w').write(gen(prof=True, **st))
```

```python
import sys, math, struct
from common import *

def f32bits(x): return struct.unpack('<I', struct.pack('<f', x))[0]

LDS_K = 0
LDS_WQ = 131072
LDS_W1 = 147456
LDS_XN0 = 155648
LDS_XN2 = 157696
LDS_Q = 159744
LDS_H = 160768
LDS_MX = 161280
LDS_LW = 161408
LDS_FL = 161536
LDS_OA = 161792
LDS_L2 = 162304
LDS_TOTAL = 163840

WS_EPOCH = 0x40000
WS_QS = 0
WS_SLOT = 0x100000
WS_Y = 0x200000
WS_XT = 0x20000
WS_HP = 0x50000
WS_QP = 0x80000
WS_PROF = 0x800000

CSCALE = (128 ** -0.5) * math.log2(math.e)

def gen(window=4, nthr=16, prof=False, sleep_q=4, sleep_l1=1, sleep_l2=1, stopP=False, noswz=False, noq=False, now='', rot=0, qk_at=8, pv0_at=12, wtrig=8, pre=0, q_delay=0, h_delay=16, burst=(0,0,0), auxexit=False, nocomp=False, mimic=True, cpre=0, xt_delay=16):
    a = Asm()
    NT = ' nt'
    def stamp(idx):
        if not prof: return
        a('s_memrealtime s[92:93]')
        a('s_waitcnt lgkmcnt(0)')
        a(f's_sub_u32 s92, s92, s96')
        a(f'v_writelane_b32 v167, s92, {idx}')
    def nop(n):
        a(f's_nop {n-1}')
    def allreduce_rows(op, v, t1, t2):
        a(f'v_mov_b32 {t1}, {v}')
        a(f'v_mov_b32 {t2}, {v}')
        nop(2)
        a(f'v_permlane16_swap_b32 {t1}, {t2}')
        nop(1)
        a(f'{op} {v}, {t1}, {t2}')
        a(f'v_mov_b32 {t1}, {v}')
        a(f'v_mov_b32 {t2}, {v}')
        nop(2)
        a(f'v_permlane32_swap_b32 {t1}, {t2}')
        nop(1)
        a(f'{op} {v}, {t1}, {t2}')
    def dpp(op, d, s0, s1, ctrl):
        a(f'{op}_dpp {d}, {s0}, {s1} {ctrl} row_mask:0xf bank_mask:0xf')
    def allreduce64_add(v, t1, t2):
        for r in (8, 4, 2, 1):
            nop(2)
            dpp('v_add_f32', v, v, v, f'row_ror:{r}')
        nop(1)
        allreduce_rows('v_add_f32', v, t1, t2)
    def lds_wait(flag_off, label, tmpa, tmpd, sreg, sleep, cmp='ne0', val=0):
        a(f'v_mov_b32 {tmpa}, {LDS_FL+flag_off}')
        a.label(label)
        a(f'ds_read_b32 {tmpd}, {tmpa}')
        a('s_waitcnt lgkmcnt(0)')
        a(f'v_readfirstlane_b32 {sreg}, {tmpd}')
        if cmp == 'ne0':
            a(f's_cmp_eq_u32 {sreg}, 0')
            a(f's_cbranch_scc0 {label}_d')
        else:
            a(f's_cmp_lt_u32 {sreg}, {val}')
            a(f's_cbranch_scc0 {label}_d')
        if sleep: a(f's_sleep {sleep}')
        a(f's_branch {label}')
        a.label(label + '_d')
    def lds_set(flag_off, tmpa, tmpd):
        a(f'v_mov_b32 {tmpa}, {LDS_FL+flag_off}\nv_mov_b32 {tmpd}, 1')
        a(f'ds_write_b32 {tmpa}, {tmpd}')
    TF = ['s84', 's85', 's86', 's87']

    a('s_cmp_ge_u32 s2, 256')
    a('s_cbranch_scc1 L_end')
    a('s_load_dwordx16 s[4:19], s[0:1], 0')
    a('s_load_dwordx8 s[20:27], s[0:1], 64')
    a('s_load_dwordx2 s[28:29], s[0:1], 96')
    if prof:
        a('s_memrealtime s[96:97]')
        a('v_mov_b32 v167, 0')
    a('v_lshrrev_b32 v1, 6, v0')
    a('v_and_b32 v0, 63, v0')
    a(f's_add_u32 s31, s2, {rot}')
    a('s_and_b32 s31, s31, 7')
    a('v_readfirstlane_b32 s30, v1')
    a('s_lshr_b32 s32, s2, 3')
    if cpre:
        a('s_cmp_eq_u32 s30, 11' if cpre == 1 else 's_cmp_eq_u32 s30, 0')
        a('s_cbranch_scc0 L_nopre')
        a('s_getpc_b64 s[40:41]')
        a('v_lshlrev_b32 v5, 7, v0')
        a('global_load_dword v164, v5, s[40:41]')
        a('v_add_u32 v5, 0x2000, v5')
        a('v_cmp_gt_u32 vcc, 40, v0')
        a('s_and_saveexec_b64 s[42:43], vcc')
        a('global_load_dword v165, v5, s[40:41]')
        a('s_mov_b64 exec, s[42:43]')
        a.label('L_nopre')
    a('v_lshrrev_b32 v2, 4, v0')
    a('v_and_b32 v3, 15, v0')
    a('v_lshlrev_b32 v4, 4, v0')
    a('s_waitcnt lgkmcnt(0)')
    a('s_mov_b32 s36, s28\ns_mov_b32 s37, s29\ns_mov_b32 s38, 0x10000000\ns_mov_b32 s39, 0x20000')
    a('s_lshr_b32 s88, s31, 2')
    a('s_lshl_b32 s89, s31, 1\ns_lshr_b32 s90, s32, 4\ns_add_u32 s89, s89, s90\ns_and_b32 s89, s89, 7')
    a('s_and_b32 s90, s32, 15')
    a('s_add_u32 s35, s31, 1\ns_and_b32 s35, s35, 3\ns_lshl_b32 s35, s35, 1\ns_lshr_b32 s34, s31, 2\ns_add_u32 s35, s35, s34')
    a(f's_lshl_b32 s33, s89, 17\ns_lshl_b32 s34, s88, 11\ns_add_u32 s33, s33, s34\ns_add_u32 s33, s33, {WS_SLOT}')
    def load_epoch():
        a(f's_load_dwordx2 s[80:81], s[28:29], {WS_EPOCH}')
    def mk_tags(aux8=False):
        a('s_waitcnt lgkmcnt(0)')
        a('s_add_u32 s82, s80, 1\ns_addc_u32 s83, s81, 0')
        a('s_and_b32 s84, s82, 0xfff')
        a('s_bfe_u32 s85, s82, 0xc000c')
        a('s_lshr_b32 s86, s82, 24\ns_lshl_b32 s87, s83, 8\ns_or_b32 s86, s86, s87\ns_and_b32 s86, s86, 0xfff')
        a('s_bfe_u32 s87, s83, 0xc0004')
        if aux8:
            a('s_and_b32 s64, s82, 0xff\ns_bfe_u32 s65, s82, 0x80008\ns_bfe_u32 s66, s82, 0x80010\ns_lshr_b32 s67, s82, 24')
    a('s_cmp_ge_u32 s30, 8')
    a('s_cbranch_scc1 L_aux')

    VV = 8; X = 72; S = 104; P = 120; T = 128
    a('s_mov_b32 s40, s6\ns_mov_b32 s41, s7\ns_mov_b32 s42, 0x2000000\ns_mov_b32 s43, 0x20000')
    a('s_mov_b32 s44, s8\ns_mov_b32 s45, s9\ns_mov_b32 s46, 0x2000000\ns_mov_b32 s47, 0x20000')
    a('s_lshl_b32 s48, s31, 5\ns_add_u32 s48, s48, s32\ns_lshl_b32 s48, s48, 17')
    a('s_lshl_b32 s49, s30, 10')
    a('s_add_u32 s48, s48, s49')
    a('s_lshl_b32 s49, s30, 14')
    a('v_lshlrev_b32 v5, 2, v2')
    a('v_lshlrev_b32 v6, 8, v2')
    for r in range(4):
        a(f'v_add_u32 v7, {r}, v5')
        a('v_xor_b32 v7, v7, v3' if not noswz else 'v_mov_b32 v7, v3')
        a(f'v_lshl_add_u32 v{140+r}, v7, 4, v6')
    seq = [('K', i) for i in range(16)] + [('V', i) for i in range(16)]
    issued = 0
    def issue(kind, i):
        nonlocal issued
        nowait = False
        if kind == 'V':
            if qk_at - burst[0] <= i < qk_at: nowait = True
            if pv0_at - burst[1] <= i < pv0_at: nowait = True
            if 16 - burst[2] <= i < 16: nowait = True
        if issued >= window and issued < nthr and not nowait:
            a(f's_waitcnt vmcnt({window-1})')
        if kind == 'K':
            a(f's_add_u32 m0, s49, {i*1024}')
            a(f's_add_u32 s50, s48, {i*8192}')
            a(f'buffer_load_dwordx4 v{140+(i&3)}, s[40:43], s50 offen{NT} lds')
        else:
            a(f's_add_u32 s50, s48, {i*8192}')
            a(f'buffer_load_dwordx4 v[{VV+4*i}:{VV+4*i+3}], v4, s[44:47], s50 offen{NT}')
        issued += 1
    k = 0
    while k < pre:
        issue(*seq[k]); k += 1
    a('s_barrier')
    while k < 4:
        issue(*seq[k]); k += 1
    load_epoch()
    a('v_lshrrev_b32 v5, 2, v3')
    a('v_lshlrev_b32 v5, 8, v5')
    a(f'v_lshl_add_u32 v5, v2, 4, v5')
    a(f'v_add_u32 v158, {LDS_Q}, v5')
    a('v_and_b32 v5, 3, v3\nv_lshlrev_b32 v5, 2, v5\nv_lshrrev_b32 v6, 2, v3\nv_add_u32 v5, v5, v6\nv_lshlrev_b32 v5, 8, v5')
    a('v_add_u32 v5, s49, v5')
    for j in range(4):
        a(f'v_or_b32 v6, {4*j}, v2')
        a('v_xor_b32 v6, v6, v3')
        a(f'v_lshl_add_u32 v{144+j}, v6, 4, v5')
    a('s_mov_b32 s56, 0x05040100\ns_mov_b32 s57, 0x07060302')
    a('v_mov_b32 v153, 0xfffff000')
    a('v_lshlrev_b32 v5, 9, v2')
    a('v_lshl_add_u32 v5, v3, 5, v5')
    a('v_add_u32 v154, s49, v5')
    a(f's_mov_b32 s52, {f32bits(math.log2(math.e) if mimic else CSCALE):#x}')
    a('v_and_b32 v148, 0x33, v0')
    a('v_lshrrev_b32 v5, 3, v0')
    a('s_lshl_b32 s53, s30, 3')
    a('v_add_u32 v5, s53, v5')
    a('v_and_b32 v6, 7, v0')
    a('v_lshlrev_b32 v7, 6, v5\nv_lshl_add_u32 v7, v6, 4, v7')
    a('s_lshl_b32 s53, s30, 4\ns_add_u32 s53, s53, 2048')
    a('v_mov_b32 v156, s53')
    a('v_cmp_gt_u32 vcc, 4, v6')
    a('v_add_u32 v157, s90, v5\nv_and_b32 v157, 15, v157\nv_lshlrev_b32 v157, 7, v157')
    a('v_cndmask_b32 v156, v156, v7, vcc')
    a('v_lshl_add_u32 v157, v5, 12, v157\nv_lshl_add_u32 v157, v6, 4, v157')
    def issue_to(n):
        nonlocal k
        while k < 16 + n:
            issue(*seq[k]); k += 1
            if k == 16 + wtrig:
                a('s_cmp_eq_u32 s30, 0')
                a('s_cbranch_scc0 L_nowt')
                lds_set(24, 'v5', 'v6')
                a.label('L_nowt')
    issue_to(qk_at)
    stamp(1)
    lds_wait(0, 'L_bq', 'v5', 'v6', 's51', 2)
    stamp(2)
    for j in range(4):
        a(f'ds_read_b128 v[{X+16+4*j}:{X+16+4*j+3}], v158 offset:{j*64}')
    a(f's_waitcnt vmcnt({min(qk_at, window)})')
    for t in range(4):
        for j in range(4):
            a(f'ds_read_b128 v[{X+4*j}:{X+4*j+3}], v{144+j} offset:{t*4096}')
        for j in range(4):
            a(f's_waitcnt lgkmcnt({3-j})')
            c = '0' if j == 0 else f'v[{S+4*t}:{S+4*t+3}]'
            a(f'v_mfma_f32_16x16x32_bf16 v[{S+4*t}:{S+4*t+3}], v[{X+4*j}:{X+4*j+3}], v[{X+16+4*j}:{X+16+4*j+3}], {c}')
    nop(8); nop(2)
    if mimic:
        a(f's_mov_b32 s60, {f32bits(128 ** -0.5):#x}\ns_mov_b32 s61, s60')
        for i in range(0, 16, 2):
            a(f'v_cvt_pk_bf16_f32 v{T+(i>>1)}, v{S+i}, v{S+i+1}')
        for i in range(0, 16, 2):
            a(f'v_lshlrev_b32 v{S+i}, 16, v{T+(i>>1)}')
            a(f'v_and_b32 v{S+i+1}, 0xffff0000, v{T+(i>>1)}')
        for i in range(0, 16, 2):
            a(f'v_pk_mul_f32 v[{S+i}:{S+i+1}], v[{S+i}:{S+i+1}], s[60:61]')
        for i in range(0, 16, 2):
            a(f'v_cvt_pk_bf16_f32 v{T+(i>>1)}, v{S+i}, v{S+i+1}')
        for i in range(0, 16, 2):
            a(f'v_lshlrev_b32 v{S+i}, 16, v{T+(i>>1)}')
            a(f'v_and_b32 v{S+i+1}, 0xffff0000, v{T+(i>>1)}')
    a(f'v_max3_f32 v5, v{S}, v{S+1}, v{S+2}')
    for i in range(3, 15, 2):
        a(f'v_max3_f32 v5, v5, v{S+i}, v{S+i+1}')
    a(f'v_max_f32 v5, v5, v{S+15}')
    allreduce_rows('v_max_f32', 'v5', 'v6', 'v7')
    a('v_mul_f32 v151, s52, v5')
    a('v_lshrrev_b32 v6, 2, v3')
    a('v_lshlrev_b32 v6, 5, v6')
    a(f's_lshl_b32 s53, s30, 2\ns_add_u32 s53, s53, {LDS_MX}')
    a('v_add_u32 v7, s53, v6')
    a('v_cmp_eq_u32 vcc, 0, v148')
    a('s_and_saveexec_b64 s[54:55], vcc')
    a('ds_write_b32 v7, v151')
    a('s_mov_b64 exec, s[54:55]')
    a(f'v_mov_b32 v149, {LDS_FL+8}\nv_mov_b32 v150, 1')
    a('v_cmp_eq_u32 vcc, 0, v0')
    a('s_and_saveexec_b64 s[54:55], vcc')
    a('ds_add_u32 v149, v150')
    a('s_mov_b64 exec, s[54:55]')
    for i in range(16):
        a(f'v_fma_f32 v{S+i}, v{S+i}, s52, -v151')
    for i in range(16):
        a(f'v_exp_f32 v{S+i}, v{S+i}')
    nop(1)
    a(f'v_add_f32 v152, v{S}, v{S+1}')
    for i in range(2, 16):
        a(f'v_add_f32 v152, v152, v{S+i}')
    for i in range(8):
        a(f'v_cvt_pk_bf16_f32 v{P+i}, v{S+2*i}, v{S+2*i+1}')
    allreduce_rows('v_add_f32', 'v152', 'v6', 'v7')
    mk_tags()
    stamp(3)
    issue_to(pv0_at)
    a(f's_waitcnt vmcnt({pv0_at-8})')
    for m in range(8):
        e, o = m >> 1, m & 1
        tb = T + 4 * (m & 1)
        sel = 's57' if o else 's56'
        for pr in range(4):
            lo = VV + 4 * (2 * pr) + e
            hi = VV + 4 * (2 * pr + 1) + e
            a(f'v_perm_b32 v{tb+pr}, v{hi}, v{lo}, {sel}')
        nop(2)
        a(f'v_mfma_f32_16x16x32_bf16 v[{X+4*m}:{X+4*m+3}], v[{P}:{P+3}], v[{tb}:{tb+3}], 0')
    issue_to(16)
    lds_wait(8, 'L_bm', 'v149', 'v150', 's51', 1, cmp='lt', val=8)
    a('v_lshrrev_b32 v6, 2, v3\nv_lshlrev_b32 v6, 5, v6')
    a(f'v_add_u32 v7, {LDS_MX}, v6')
    a(f'ds_read_b128 v[{S}:{S+3}], v7')
    a(f'ds_read_b128 v[{S+4}:{S+7}], v7 offset:16')
    a('s_waitcnt lgkmcnt(0)')
    a(f'v_max3_f32 v5, v{S}, v{S+1}, v{S+2}')
    a(f'v_max3_f32 v5, v5, v{S+3}, v{S+4}')
    a(f'v_max3_f32 v5, v5, v{S+5}, v{S+6}')
    a(f'v_max_f32 v5, v5, v{S+7}')
    a('v_and_b32 v5, 0xfffff000, v5')
    a('v_sub_f32 v155, v151, v5')
    a('v_exp_f32 v155, v155')
    a(f'v_mul_f32 v{T}, 0.125, v5'.replace('0.125', '0x3e000000'))
    a(f'v_mov_b32 v{T+2}, 0\nv_mov_b32 v{T+3}, 0')
    a(f'v_mul_f32 v{T+1}, v152, v155')
    a('v_lshrrev_b32 v6, 2, v3\nv_lshlrev_b32 v6, 4, v6')
    a('s_add_u32 s53, s49, 2048')
    a('v_add_u32 v7, s53, v6')
    a('v_cmp_eq_u32 vcc, 0, v148')
    a('s_and_saveexec_b64 s[54:55], vcc')
    a(f'ds_write_b128 v7, v[{T}:{T+3}]')
    a('s_mov_b64 exec, s[54:55]')
    a(f'v_lshlrev_b32 v7, 5, v2\nv_add_u32 v7, {LDS_MX}, v7')
    a('s_lshl_b32 s53, s30, 2')
    a('v_add_u32 v6, s53, v7')
    a(f'ds_read_b128 v[{S}:{S+3}], v7')
    a(f'ds_read_b128 v[{S+4}:{S+7}], v7 offset:16')
    a(f'ds_read_b32 v155, v6')
    a('s_waitcnt lgkmcnt(0)')
    a(f'v_max3_f32 v5, v{S}, v{S+1}, v{S+2}')
    a(f'v_max3_f32 v5, v5, v{S+3}, v{S+4}')
    a(f'v_max3_f32 v5, v5, v{S+5}, v{S+6}')
    a(f'v_max_f32 v5, v5, v{S+7}')
    a('v_and_b32 v5, 0xfffff000, v5')
    a('v_sub_f32 v155, v155, v5')
    a('v_exp_f32 v155, v155')
    stamp(4)
    for pr in range(4):
        a(f's_waitcnt vmcnt({6-2*pr})')
        if pr == 3: stamp(5)
        order = list(range(8))
        for m in order:
            e, o = m >> 1, m & 1
            sel = 's57' if o else 's56'
            lo = VV + 4 * (8 + 2 * pr) + e
            hi = VV + 4 * (8 + 2 * pr + 1) + e
            a(f'v_perm_b32 v{VV+4*m+pr}, v{hi}, v{lo}, {sel}')
            if pr == 3 and m >= 2:
                mm = m - 2
                a(f'v_mfma_f32_16x16x32_bf16 v[{X+4*mm}:{X+4*mm+3}], v[{P+4}:{P+7}], v[{VV+4*mm}:{VV+4*mm+3}], v[{X+4*mm}:{X+4*mm+3}]')
    nop(1)
    for mm in (6, 7):
        a(f'v_mfma_f32_16x16x32_bf16 v[{X+4*mm}:{X+4*mm+3}], v[{P+4}:{P+7}], v[{VV+4*mm}:{VV+4*mm+3}], v[{X+4*mm}:{X+4*mm+3}]')
    nop(4)
    for m in range(8):
        a(f'v_mul_f32 v{S+m}, v{X+4*m}, v155')
        if m == 5: nop(4)
    a(f'ds_write_b128 v154, v[{S}:{S+3}]')
    a(f'ds_write_b128 v154, v[{S+4}:{S+7}] offset:16')
    a('s_waitcnt lgkmcnt(0)')
    a('s_barrier')
    stamp(6)
    a('s_cmp_ge_u32 s30, 4')
    a('s_cbranch_scc1 L_bpub_done')
    a('v_add_u32 v6, 0x10000, v156')
    for w in range(4):
        a(f'ds_read_b128 v[{X+4*w}:{X+4*w+3}], v156 offset:{w*16384}')
    for w in range(4):
        a(f'ds_read_b128 v[{X+16+4*w}:{X+16+4*w+3}], v6 offset:{w*16384}')
    a('s_waitcnt lgkmcnt(4)')
    for i in range(0, 4, 2):
        a(f'v_pk_add_f32 v[{X+i}:{X+i+1}], v[{X+i}:{X+i+1}], v[{X+4+i}:{X+4+i+1}]')
        a(f'v_pk_add_f32 v[{X+8+i}:{X+8+i+1}], v[{X+8+i}:{X+8+i+1}], v[{X+12+i}:{X+12+i+1}]')
    a('s_waitcnt lgkmcnt(0)')
    for i in range(0, 4, 2):
        a(f'v_pk_add_f32 v[{X+16+i}:{X+16+i+1}], v[{X+16+i}:{X+16+i+1}], v[{X+20+i}:{X+20+i+1}]')
        a(f'v_pk_add_f32 v[{X+24+i}:{X+24+i+1}], v[{X+24+i}:{X+24+i+1}], v[{X+28+i}:{X+28+i+1}]')
    for i in range(0, 4, 2):
        a(f'v_pk_add_f32 v[{X+i}:{X+i+1}], v[{X+i}:{X+i+1}], v[{X+8+i}:{X+8+i+1}]')
        a(f'v_pk_add_f32 v[{X+16+i}:{X+16+i+1}], v[{X+16+i}:{X+16+i+1}], v[{X+24+i}:{X+24+i+1}]')
    for i in range(0, 4, 2):
        a(f'v_pk_add_f32 v[{X+i}:{X+i+1}], v[{X+i}:{X+i+1}], v[{X+16+i}:{X+16+i+1}]')
    for i in range(4):
        a(f'v_and_or_b32 v{X+i}, v{X+i}, v153, {TF[i]}')
    a(f'buffer_store_dwordx4 v[{X}:{X+3}], v157, s[36:39], s33 offen sc1')
    a.label('L_bpub_done')
    stamp(7)
    if prof:
        a('s_waitcnt vmcnt(0)')
        stamp(9)
    if stopP: a('s_branch L_fin')
    a('s_cmp_ge_u32 s2, 32')
    a('s_cbranch_scc1 L_fin')
    a(f's_lshl_b32 s58, s30, 12\ns_lshl_b32 s59, s2, 15\ns_add_u32 s58, s58, s59\ns_add_u32 s58, s58, {WS_Y}')
    a('s_mov_b32 s68, s24\ns_mov_b32 s69, s25\ns_mov_b32 s70, 2048\ns_mov_b32 s71, 0x20000')
    a('s_lshl_b32 s59, s2, 6')
    a('v_and_b32 v8, 31, v0\nv_lshlrev_b32 v8, 1, v8')
    lds_wait(20, 'L_by', 'v6', 'v7', 's51', 1)
    stamp(12)
    a('s_cmp_eq_u32 s30, 0')
    a('s_cbranch_scc0 L_l2')
    a('s_mov_b32 s60, s4\ns_mov_b32 s61, s5\ns_mov_b32 s62, 2048\ns_mov_b32 s63, 0x20000')
    a('s_mov_b32 s64, s22\ns_mov_b32 s65, s23\ns_mov_b32 s66, 1024\ns_mov_b32 s67, 0x20000')
    a('s_and_b32 s72, s59, 1023')
    a(f'buffer_load_ushort v9, v8, s[60:63], s59 offen')
    a(f'buffer_load_ushort v10, v8, s[64:67], s72 offen')
    a.label('L_l2')
    for t in range(4):
        a(f'buffer_load_dwordx4 v[{X+4*t}:{X+4*t+3}], v4, s[36:39], s58 offen offset:{t*1024} sc1')
    a('s_waitcnt vmcnt(0)')
    for t in range(4):
        for i in range(4):
            a(f'v_xor_b32 v{X+4*t+i}, {TF[i]}, v{X+4*t+i}')
    a(f'v_or3_b32 v7, v{X}, v{X+1}, v{X+2}')
    for i in range(3, 15, 2):
        a(f'v_or3_b32 v7, v7, v{X+i}, v{X+i+1}')
    a(f'v_or_b32 v7, v7, v{X+15}')
    a('v_and_b32 v7, 0xfff, v7')
    a('v_cmp_ne_u32 vcc, 0, v7')
    a('s_cbranch_vccz L_l2_done')
    if sleep_l2: a(f's_sleep {sleep_l2}')
    a('s_branch L_l2')
    a.label('L_l2_done')
    stamp(10)
    for i in range(4):
        a(f'v_add_f32 v{X+i}, v{X+i}, v{X+4+i}')
        a(f'v_add_f32 v{X+8+i}, v{X+8+i}, v{X+12+i}')
    for i in range(4):
        a(f'v_add_f32 v{X+i}, v{X+i}, v{X+8+i}')
    nop(1)
    for i in range(4):
        dpp('v_add_f32', f'v{X+i}', f'v{X+i}', f'v{X+i}', 'row_ror:8')
    a(f's_lshl_b32 s73, s30, 7\ns_add_u32 s73, s73, {LDS_L2}')
    a(f'v_permlane16_swap_b32 v{X}, v{X+1}')
    a(f'v_permlane16_swap_b32 v{X+2}, v{X+3}')
    a('v_and_b32 v6, 7, v0\nv_lshlrev_b32 v6, 4, v6')
    a(f'v_add_f32 v{X}, v{X}, v{X+1}')
    a(f'v_add_f32 v{X+2}, v{X+2}, v{X+3}')
    a('v_lshl_add_u32 v6, v2, 2, v6')
    nop(1)
    a(f'v_permlane32_swap_b32 v{X}, v{X+2}')
    a('v_add_u32 v6, s73, v6')
    a(f'v_add_f32 v{X}, v{X}, v{X+2}')
    a('v_and_b32 v7, 8, v0')
    a('v_cmp_eq_u32 vcc, 0, v7')
    a('s_and_saveexec_b64 s[54:55], vcc')
    a(f'ds_write_b32 v6, v{X}')
    a('s_mov_b64 exec, s[54:55]')
    a('s_waitcnt lgkmcnt(0)')
    a('s_barrier')
    stamp(11)
    a('s_cmp_eq_u32 s30, 0')
    a('s_cbranch_scc0 L_fin')
    a('v_and_b32 v6, 31, v0\nv_lshlrev_b32 v6, 2, v6')
    a(f'v_add_u32 v6, {LDS_L2}, v6')
    for w in range(8):
        a(f'ds_read_b32 v{X+w}, v6 offset:{w*128}')
    a('v_lshlrev_b32 v9, 16, v9\nv_lshlrev_b32 v10, 16, v10')
    a('v_add_f32 v9, v9, v10')
    a('s_waitcnt lgkmcnt(0)')
    a(f'v_add_f32 v{X}, v{X}, v{X+1}\nv_add_f32 v{X+2}, v{X+2}, v{X+3}\nv_add_f32 v{X+4}, v{X+4}, v{X+5}\nv_add_f32 v{X+6}, v{X+6}, v{X+7}')
    a(f'v_add_f32 v{X}, v{X}, v{X+2}\nv_add_f32 v{X+4}, v{X+4}, v{X+6}')
    a(f'v_add_f32 v{X}, v{X}, v{X+4}')
    a(f'v_add_f32 v{X}, v{X}, v9')
    a(f'v_cvt_pk_bf16_f32 v{X}, v{X}, v{X}')
    a('v_cmp_gt_u32 vcc, 32, v0')
    a('s_and_saveexec_b64 s[54:55], vcc')
    a(f'buffer_store_short v{X}, v8, s[68:71], s59 offen')
    a('s_mov_b64 exec, s[54:55]')
    stamp(8)
    a('s_cmp_eq_u32 s2, 0')
    a('s_cbranch_scc0 L_fin')
    a(f'v_mov_b32 v{X+2}, s82\nv_mov_b32 v{X+3}, s83\nv_mov_b32 v6, {WS_EPOCH}')
    a('v_cmp_eq_u32 vcc, 0, v0')
    a('s_and_saveexec_b64 s[54:55], vcc')
    a(f'buffer_store_dwordx2 v[{X+2}:{X+3}], v6, s[36:39], 0 offen')
    a('s_mov_b64 exec, s[54:55]')
    a('s_branch L_fin')

    a.label('L_aux')
    a('s_sub_u32 s30, s30, 8')
    a('s_setprio 3')
    a('s_mov_b32 s40, s4\ns_mov_b32 s41, s5\ns_mov_b32 s42, 2048\ns_mov_b32 s43, 0x20000')
    a('s_mov_b32 s44, s10\ns_mov_b32 s45, s11\ns_mov_b32 s46, 0x400000\ns_mov_b32 s47, 0x20000')
    a(f's_mov_b32 s48, s16\ns_mov_b32 s49, s17\ns_mov_b32 s50, {512*1792*2}\ns_mov_b32 s51, 0x20000')
    a('s_mov_b32 s52, s12\ns_mov_b32 s53, s13\ns_mov_b32 s54, 0x400000\ns_mov_b32 s55, 0x20000')
    a(f's_mov_b32 s56, s20\ns_mov_b32 s57, s21\ns_mov_b32 s58, {512*1792*2}\ns_mov_b32 s59, 0x20000')
    a('s_mov_b32 s60, s18\ns_mov_b32 s61, s19\ns_mov_b32 s62, 3584\ns_mov_b32 s63, 0x20000')
    a('s_mul_i32 s68, s35, 28\ns_add_u32 s68, s68, s32')
    a('s_cmp_eq_u32 s30, 0\ns_cbranch_scc1 L_a0')
    a('s_cmp_eq_u32 s30, 1\ns_cbranch_scc1 L_a1')
    a('s_cmp_eq_u32 s30, 2\ns_cbranch_scc1 L_a2')
    a(f'v_mov_b32 v5, {LDS_FL}\nv_lshl_add_u32 v5, v0, 2, v5\nv_mov_b32 v6, 0')
    a('v_cmp_gt_u32 vcc, 8, v0')
    a('s_and_saveexec_b64 s[70:71], vcc')
    a('ds_write_b32 v5, v6')
    a('s_mov_b64 exec, s[70:71]')
    a('s_waitcnt lgkmcnt(0)')
    a('s_barrier')
    load_epoch()
    mk_tags(True)
    a('s_getreg_b32 s72, hwreg(HW_REG_XCC_ID)')
    a('v_mov_b32 v8, s72\nv_mov_b32 v9, 0\nv_mov_b32 v10, s82\nv_mov_b32 v11, s83')
    a(f's_lshl_b32 s72, s2, 4\ns_add_u32 s72, s72, {WS_XT}')
    a('v_mov_b32 v5, 0')
    a('v_cmp_eq_u32 vcc, 0, v0')
    a('s_and_saveexec_b64 s[70:71], vcc')
    a('buffer_store_dwordx4 v[8:11], v5, s[36:39], s72 offen sc1')
    a('s_mov_b64 exec, s[70:71]')
    a('s_branch L_acommon')

    def layernorm():
        for b in range(2):
            src = 8 + 4 * b
            F = 16
            for i in range(4):
                a(f'v_lshlrev_b32 v{F+2*i}, 16, v{src+i}')
                a(f'v_and_b32 v{F+2*i+1}, 0xffff0000, v{src+i}')
            a(f'v_add_f32 v24, v{F}, v{F+1}')
            for i in range(2, 8):
                a(f'v_add_f32 v24, v24, v{F+i}')
            allreduce64_add('v24', 'v26', 'v27')
            a(f'v_mul_f32 v24, {f32bits(1.0/512):#x}, v24')
            a('v_mov_b32 v25, 0')
            for i in range(8):
                a(f'v_sub_f32 v26, v{F+i}, v24')
                a('v_fmac_f32 v25, v26, v26')
            allreduce64_add('v25', 'v26', 'v27')
            a(f'v_mul_f32 v25, {f32bits(1.0/512):#x}, v25')
            a('v_cvt_pk_bf16_f32 v26, v24, v25')
            a('v_lshlrev_b32 v24, 16, v26')
            a('v_and_b32 v25, 0xffff0000, v26')
            a(f'v_add_f32 v25, {f32bits(1e-5):#x}, v25')
            a('v_cvt_pk_bf16_f32 v25, v25, v25')
            a('v_and_b32 v25, 0xffff0000, v25')
            a('v_sqrt_f32 v25, v25')
            nop(1)
            a('v_cvt_pk_bf16_f32 v25, v25, v25')
            a('v_and_b32 v25, 0xffff0000, v25')
            a('v_rcp_f32 v28, v25')
            for i in range(8):
                a(f'v_sub_f32 v{F+i}, v{F+i}, v24')
            for i in range(4):
                a(f'v_cvt_pk_bf16_f32 v26, v{F+2*i}, v{F+2*i+1}')
                a(f'v_lshlrev_b32 v{F+2*i}, 16, v26')
                a(f'v_and_b32 v{F+2*i+1}, 0xffff0000, v26')
            for i in range(8):
                a(f'v_mul_f32 v26, v{F+i}, v28')
                a(f'v_fma_f32 v27, -v26, v25, v{F+i}')
                a(f'v_fma_f32 v{F+i}, v27, v28, v26')
            for i in range(4):
                a(f'v_cvt_pk_bf16_f32 v{src+i}, v{F+2*i}, v{F+2*i+1}')

    def proj(tile_base, xn_addr_s, nks):
        a('v_lshrrev_b32 v5, 2, v3\nv_lshl_add_u32 v5, v2, 3, v5\nv_lshlrev_b32 v5, 7, v5\nv_and_b32 v6, 3, v3\nv_lshl_add_u32 v5, v6, 3, v5')
        a(f'v_add_u32 v5, {tile_base}, v5')
        a('v_lshrrev_b32 v30, 3, v3')
        a('v_lshlrev_b32 v30, 10, v30')
        a('v_lshl_add_u32 v30, v2, 4, v30')
        a(f'v_add_u32 v30, {xn_addr_s}, v30')
        for ks in range(nks):
            a(f'ds_read_b128 v[48:51], v30 offset:{ks*64}')
            for ct in range(4):
                a(f'ds_read_b64_tr_b16 v[{32+4*ct}:{33+4*ct}], v5 offset:{ks*4096+ct*32}')
                a(f'ds_read_b64_tr_b16 v[{34+4*ct}:{35+4*ct}], v5 offset:{ks*4096+ct*32+512}')
            for ct in range(4):
                a(f's_waitcnt lgkmcnt({2*(3-ct)})')
                c = '0' if ks == 0 else f'v[{64+4*ct}:{67+4*ct}]'
                a(f'v_mfma_f32_16x16x32_bf16 v[{64+4*ct}:{67+4*ct}], v[{32+4*ct}:{35+4*ct}], v[48:51], {c}')
        nop(8); nop(2)
        a('v_and_b32 v6, 3, v3')
        for i in range(4): a(f'v_mov_b32 v{16+i}, v{64+i}')
        for ct in range(1, 4):
            a(f'v_cmp_eq_u32 vcc, {ct}, v6')
            nop(2)
            for i in range(4): a(f'v_cndmask_b32 v{16+i}, v{16+i}, v{64+4*ct+i}, vcc')
        a('v_mov_b32 v20, 0xffffff00')
        for i in range(4): a(f'v_add_u32 v{16+i}, 0x80, v{16+i}')
        for i in range(4): a(f'v_and_or_b32 v{16+i}, v{16+i}, v20, s{64+i}')
        a('v_lshlrev_b32 v7, 6, v6\nv_lshl_add_u32 v7, v2, 4, v7')
        a('v_and_b32 v6, 4, v3')
        a('v_cmp_eq_u32 vcc, 0, v6')

    a.label('L_a0')
    a('buffer_load_dwordx4 v[8:11], v4, s[40:43], 0 offen')
    a('buffer_load_dwordx4 v[12:15], v4, s[40:43], 0 offen offset:1024')
    a('v_lshrrev_b32 v5, 3, v0\nv_lshlrev_b32 v5, 13, v5\nv_and_b32 v6, 7, v0\nv_lshl_add_u32 v5, v6, 4, v5')
    a('s_lshl_b32 s72, s35, 10\ns_and_b32 s73, s32, 7\ns_lshl_b32 s73, s73, 7\ns_add_u32 s72, s72, s73')
    a('s_lshr_b32 s73, s32, 3\ns_lshl_b32 s73, s73, 20\ns_add_u32 s72, s72, s73')
    for i in range(16):
        a(f's_mov_b32 m0, {LDS_WQ + i*1024}')
        if 'q' not in now: a(f'buffer_load_dwordx4 v5, s[44:47], s72 offen{NT} lds')
        if i < 15: a(f's_add_u32 s72, s72, {8*8192}')
    a('s_barrier')
    load_epoch()
    a('s_waitcnt vmcnt(16)' if 'q' not in now else 's_waitcnt vmcnt(0)')
    mk_tags(True)
    stamp(1)
    layernorm()
    a(f'v_add_u32 v5, {LDS_XN0}, v4')
    a('ds_write_b128 v5, v[8:11]')
    a('ds_write_b128 v5, v[12:15] offset:1024')
    a('s_waitcnt vmcnt(0) lgkmcnt(0)')
    stamp(2)
    a(f's_lshr_b32 s73, s32, 3\ns_lshl_b32 s73, s73, 8\ns_add_u32 s73, s73, {LDS_XN0}')
    proj(LDS_WQ, 's73', 4)
    a('v_lshrrev_b32 v6, 3, v3\nv_lshl_add_u32 v7, v6, 13, v7')
    a(f's_lshl_b32 s69, s35, 14\ns_lshr_b32 s72, s32, 3\ns_lshl_b32 s72, s72, 11\ns_add_u32 s69, s69, s72\ns_and_b32 s72, s32, 7\ns_lshl_b32 s72, s72, 8\ns_add_u32 s69, s69, s72\ns_add_u32 s69, s69, {WS_QP}')
    a('s_and_saveexec_b64 s[70:71], vcc')
    a('buffer_store_dwordx4 v[16:19], v7, s[36:39], s69 offen sc1')
    a('s_mov_b64 exec, s[70:71]')
    lds_set(12, 'v5', 'v6')
    stamp(3)
    a('s_branch L_acommon')

    a.label('L_a1')
    a('s_barrier')
    load_epoch()
    mk_tags(True)
    lds_wait(12, 'L_a1_p', 'v5', 'v6', 's75', 4)
    stamp(1)
    a(f's_lshl_b32 s72, s89, 14\ns_lshl_b32 s73, s88, 13\ns_add_u32 s72, s72, s73\ns_add_u32 s72, s72, {WS_QP}')
    a('s_add_u32 s73, s72, 4096')
    if noq: a('s_branch L_a1_qd')
    if q_delay: a(f's_sleep {q_delay}')
    a.label('L_a1_q')
    for d in range(4):
        sr = 's72' if d < 2 else 's73'
        a(f'buffer_load_dwordx4 v[{8+8*d}:{11+8*d}], v4, s[36:39], {sr} offen offset:{(d&1)*2048} sc1')
        a(f'buffer_load_dwordx4 v[{12+8*d}:{15+8*d}], v4, s[36:39], {sr} offen offset:{(d&1)*2048+1024} sc1')
    a('s_waitcnt vmcnt(0)')
    for r in range(8, 40):
        a(f'v_xor_b32 v{r}, s{64+(r&3)}, v{r}')
    a('v_or3_b32 v6, v8, v9, v10')
    for r in range(11, 39, 2):
        a(f'v_or3_b32 v6, v6, v{r}, v{r+1}')
    a('v_or_b32 v6, v6, v39')
    a('v_and_b32 v6, 0xff, v6')
    a('v_cmp_ne_u32 vcc, 0, v6')
    a('s_cbranch_vccz L_a1_qd')
    if sleep_q: a(f's_sleep {sleep_q}')
    a('s_branch L_a1_q')
    a.label('L_a1_qd')
    for r in range(0, 8, 2):
        a(f'v_pk_add_f32 v[{8+r}:{9+r}], v[{8+r}:{9+r}], v[{16+r}:{17+r}]')
        a(f'v_pk_add_f32 v[{24+r}:{25+r}], v[{24+r}:{25+r}], v[{32+r}:{33+r}]')
    for r in range(0, 8, 2):
        a(f'v_pk_add_f32 v[{8+r}:{9+r}], v[{8+r}:{9+r}], v[{24+r}:{25+r}]')
    a('v_cvt_pk_bf16_f32 v16, v8, v9\nv_cvt_pk_bf16_f32 v17, v10, v11\nv_cvt_pk_bf16_f32 v18, v12, v13\nv_cvt_pk_bf16_f32 v19, v14, v15')
    a(f'v_lshlrev_b32 v5, 3, v0\nv_add_u32 v5, {LDS_Q}, v5')
    a('ds_write_b64 v5, v[16:17]')
    a('ds_write_b64 v5, v[18:19] offset:512')
    a('s_waitcnt lgkmcnt(0)')
    lds_set(0, 'v5', 'v6')
    stamp(2)
    a('s_branch L_acommon')

    a.label('L_a2')
    a('s_cmp_ge_u32 s32, 28')
    a('s_cbranch_scc1 L_a2_skip')
    a('buffer_load_dwordx4 v[8:11], v4, s[40:43], 0 offen')
    a('buffer_load_dwordx4 v[12:15], v4, s[40:43], 0 offen offset:1024')
    a('s_mov_b32 s72, 3584\nv_lshrrev_b32 v5, 3, v0\nv_mul_lo_u32 v5, v5, s72\nv_and_b32 v6, 7, v0\nv_lshl_add_u32 v5, v6, 4, v5')
    a(f's_mul_i32 s72, s35, {64*3584}\ns_lshl_b32 s73, s32, 7\ns_add_u32 s72, s72, s73')
    for i in range(8):
        a(f's_mov_b32 m0, {LDS_W1 + i*1024}')
        if '1' not in now: a(f'buffer_load_dwordx4 v5, s[48:51], s72 offen{NT} lds')
        if i < 7: a(f's_add_u32 s72, s72, {8*3584}')
    a('v_and_b32 v6, 1, v2\nv_lshlrev_b32 v6, 3, v6')
    a('s_lshl_b32 s72, s68, 4')
    a('buffer_load_dwordx2 v[80:81], v6, s[60:63], s72 offen')
    a('s_barrier')
    load_epoch()
    a('s_waitcnt vmcnt(9)' if '1' not in now else 's_waitcnt vmcnt(1)')
    mk_tags(True)
    layernorm()
    a(f'v_add_u32 v5, {LDS_XN2}, v4')
    a('ds_write_b128 v5, v[8:11]')
    a('ds_write_b128 v5, v[12:15] offset:1024')
    a('s_waitcnt vmcnt(0) lgkmcnt(0)')
    a(f's_lshl_b32 s73, s35, 7\ns_add_u32 s73, s73, {LDS_XN2}')
    proj(LDS_W1, 's73', 2)
    a('v_lshrrev_b32 v6, 3, v3\nv_lshl_add_u32 v7, v6, 8, v7')
    a(f's_lshl_b32 s69, s32, 12\ns_lshl_b32 s72, s35, 9\ns_add_u32 s69, s69, s72\ns_add_u32 s69, s69, {WS_HP}')
    a('s_and_saveexec_b64 s[70:71], vcc')
    a('buffer_store_dwordx4 v[16:19], v7, s[36:39], s69 offen sc1')
    a('s_mov_b64 exec, s[70:71]')
    a('v_and_b32 v5, 7, v3\nv_lshlrev_b32 v5, 9, v5\nv_lshrrev_b32 v6, 3, v3\nv_lshl_add_u32 v5, v6, 8, v5\nv_and_b32 v6, 1, v2\nv_lshl_add_u32 v5, v6, 4, v5')
    a(f's_lshr_b32 s72, s68, 3\ns_lshl_b32 s72, s72, 12\ns_and_b32 s73, s68, 7\ns_lshl_b32 s73, s73, 5\ns_add_u32 s72, s72, s73\ns_add_u32 s72, s72, {WS_HP}')
    a(f's_sleep {h_delay}')
    a.label('L_a2_h')
    a('buffer_load_dwordx4 v[64:67], v5, s[36:39], s72 offen sc1')
    a('s_waitcnt vmcnt(0)')
    for i in range(4): a(f'v_xor_b32 v{64+i}, s{64+i}, v{64+i}')
    a('v_or3_b32 v6, v64, v65, v66\nv_or_b32 v6, v6, v67\nv_and_b32 v6, 0xff, v6')
    a('v_cmp_ne_u32 vcc, 0, v6')
    a('s_cbranch_vccz L_a2_hd')
    a('s_sleep 8')
    a('s_branch L_a2_h')
    a.label('L_a2_hd')
    for ctl in ['quad_perm:[1,0,3,2]', 'quad_perm:[2,3,0,1]', 'row_half_mirror']:
        nop(1)
        for i in range(4):
            dpp('v_add_f32', f'v{64+i}', f'v{64+i}', f'v{64+i}', ctl)
    nop(1)
    a('v_cvt_pk_bf16_f32 v68, v64, v65\nv_cvt_pk_bf16_f32 v69, v66, v67')
    a('v_lshlrev_b32 v64, 16, v68\nv_and_b32 v65, 0xffff0000, v68\nv_lshlrev_b32 v66, 16, v69\nv_and_b32 v67, 0xffff0000, v69')
    a('v_lshlrev_b32 v72, 16, v80\nv_and_b32 v73, 0xffff0000, v80\nv_lshlrev_b32 v74, 16, v81\nv_and_b32 v75, 0xffff0000, v81')
    for i in range(4):
        a(f'v_add_f32 v{64+i}, v{64+i}, v{72+i}')
    a('v_cvt_pk_bf16_f32 v68, v64, v65\nv_cvt_pk_bf16_f32 v69, v66, v67')
    a('v_lshlrev_b32 v64, 16, v68\nv_and_b32 v65, 0xffff0000, v68\nv_lshlrev_b32 v66, 16, v69\nv_and_b32 v67, 0xffff0000, v69')
    kk = -2.0 * math.sqrt(2.0 / math.pi) * math.log2(math.e)
    a(f's_mov_b32 s72, {f32bits(0.044715):#x}\ns_mov_b32 s73, {f32bits(kk):#x}')
    for i in range(4):
        x = f'v{64+i}'; t = f'v{72+i}'
        a(f'v_mul_f32 {t}, {x}, {x}')
        a(f'v_mul_f32 {t}, {t}, {x}')
        a(f'v_fma_f32 {t}, {t}, s72, {x}')
        a(f'v_mul_f32 {t}, s73, {t}')
        a(f'v_exp_f32 {t}, {t}')
        nop(1)
        a(f'v_add_f32 {t}, 1.0, {t}')
        a(f'v_rcp_f32 {t}, {t}')
        nop(1)
        a(f'v_mul_f32 {x}, {x}, {t}')
    a('v_cvt_pk_bf16_f32 v68, v64, v65\nv_cvt_pk_bf16_f32 v69, v66, v67')
    a('v_cmp_gt_u32 vcc, 2, v2')
    nop(2)
    a('v_cndmask_b32 v68, 0, v68, vcc\nv_cndmask_b32 v69, 0, v69, vcc')
    a(f'v_lshlrev_b32 v5, 3, v0\nv_add_u32 v5, {LDS_H}, v5')
    a('ds_write_b64 v5, v[68:69]')
    a('s_waitcnt lgkmcnt(0)')
    lds_set(4, 'v5', 'v6')
    a('s_branch L_acommon')
    a.label('L_a2_skip')
    a('s_barrier')
    load_epoch()
    mk_tags(True)

    a.label('L_acommon')
    LO = 76; L2 = 92; TO = 108; T2 = 124; ACC = 8
    if auxexit:
        a('s_add_u32 s30, s30, 8')
        a('s_branch L_fin')
    a('v_lshrrev_b32 v5, 3, v3\nv_lshlrev_b32 v5, 4, v5\nv_and_b32 v6, 7, v3\nv_add_u32 v5, v5, v6')
    a('v_lshlrev_b32 v43, 7, v5')
    a('v_lshl_add_u32 v42, v2, 4, v43')
    a(f's_lshl_b32 s72, s35, 17\ns_add_u32 s72, s72, {WS_SLOT}')
    a('s_lshl_b32 s74, s32, 12\ns_add_u32 s74, s74, s72')
    a(f's_add_u32 s78, s74, {8*128}')
    a('v_and_b32 v6, 1, v2')
    a('v_lshrrev_b32 v5, 1, v2\nv_lshlrev_b32 v5, 4, v5\nv_lshrrev_b32 v7, 2, v3\nv_add_u32 v5, v5, v7')
    a('s_lshl_b32 s72, s30, 2')
    a('v_add_u32 v5, s72, v5')
    a('v_add_u32 v7, s2, v5\nv_and_b32 v7, 255, v7\nv_lshlrev_b32 v7, 7, v7')
    a('v_lshl_add_u32 v5, v5, 15, v7')
    a('v_and_b32 v7, 3, v3\nv_lshl_add_u32 v5, v7, 5, v5\nv_lshl_add_u32 v60, v6, 4, v5')
    a('v_lshrrev_b32 v5, 15, v60\nv_lshlrev_b32 v5, 4, v5')
    a(f's_mov_b32 s73, {WS_XT}')
    a(f's_sleep {xt_delay}')
    a.label('L_xt')
    a('buffer_load_dwordx4 v[44:47], v5, s[36:39], s73 offen sc1')
    a('s_waitcnt vmcnt(0)')
    a('v_xor_b32 v46, s82, v46\nv_xor_b32 v47, s83, v47\nv_or_b32 v46, v46, v47')
    a('v_cmp_ne_u32 vcc, 0, v46')
    a('s_cbranch_vccz L_xt_d')
    a('s_sleep 16')
    a('s_branch L_xt')
    a.label('L_xt_d')
    a('s_getreg_b32 s73, hwreg(HW_REG_XCC_ID)')
    a('v_cmp_eq_u32 s[98:99], s73, v44')
    a('v_mov_b32 v61, 0xfffff000')
    a(f'v_lshlrev_b32 v62, 3, v0\nv_add_u32 v62, {LDS_OA}, v62')
    a(f'v_mov_b32 v63, {LDS_FL+16}')
    a('s_mov_b32 s76, 0x05040100\ns_mov_b32 s77, 0x07060302')
    a('v_mov_b32 v40, 0\nv_mov_b32 v41, 0')
    a('s_cmp_ge_u32 s32, 28')
    a('s_cbranch_scc1 L_noh')
    lds_wait(4, 'L_ah', 'v5', 'v6', 's75', 4)
    a(f'v_lshlrev_b32 v5, 3, v0\nv_add_u32 v5, {LDS_H}, v5')
    a('ds_read_b64 v[40:41], v5')
    a('s_waitcnt lgkmcnt(0)')
    a.label('L_noh')
    a('v_lshlrev_b32 v68, 12, v2\nv_lshl_add_u32 v68, v3, 4, v68')
    a('s_lshl_b32 s72, s35, 9\ns_lshl_b32 s73, s32, 4\ns_add_u32 s72, s72, s73\ns_lshl_b32 s72, s72, 10')
    a('s_lshl_b32 s73, s30, 8\ns_add_u32 s72, s72, s73')
    a('v_and_b32 v6, 1, v2\nv_lshlrev_b32 v6, 12, v6\nv_lshl_add_u32 v69, v3, 4, v6')
    a('s_min_u32 s79, s32, 27\ns_mul_i32 s75, s35, 28\ns_add_u32 s79, s79, s75')
    a('s_lshl_b32 s79, s79, 13\ns_add_u32 s79, s79, s73')
    if wtrig > 0: lds_wait(24, 'L_aw', 'v5', 'v6', 's75', 8)
    for i in range(4):
        a(f'buffer_load_dwordx4 v[{L2+4*i}:{L2+4*i+3}], v69, s[56:59], s79 offen offset:{i*1024}{NT}')
    for i in range(4):
        a(f'buffer_load_dwordx4 v[{LO+4*i}:{LO+4*i+3}], v68, s[52:55], s72 offen offset:{i*1024}{NT}')
    a(f's_mov_b32 s72, {WS_Y}')
    stamp(4)
    a('s_barrier')
    stamp(5)
    if stopP:
        a('s_add_u32 s30, s30, 8')
        a('s_branch L_fin')
    a('s_cmp_eq_u32 s30, 0')
    a('s_cbranch_scc0 L_nop1')
    a('buffer_load_dwordx4 v[44:47], v42, s[36:39], s74 offen sc1')
    a('buffer_load_dwordx4 v[48:51], v42, s[36:39], s78 offen sc1')
    a('buffer_load_dwordx4 v[52:55], v43, s[36:39], s74 offen offset:64 sc1')
    a('buffer_load_dwordx4 v[64:67], v43, s[36:39], s78 offen offset:64 sc1')
    a('s_waitcnt vmcnt(8)')
    a('s_branch L_w2go')
    a.label('L_nop1')
    a('s_waitcnt vmcnt(4)')
    a.label('L_w2go')
    for m in range(8):
        e, o = m >> 1, m & 1
        sel = 's77' if o else 's76'
        a(f'v_perm_b32 v{T2+2*m}, v{L2+4+e}, v{L2+e}, {sel}')
        a(f'v_perm_b32 v{T2+2*m+1}, v{L2+12+e}, v{L2+8+e}, {sel}')
    nop(2)
    for m in range(8):
        a(f'v_mfma_f32_16x16x16_bf16 v[{ACC+4*m}:{ACC+4*m+3}], v[40:41], v[{T2+2*m}:{T2+2*m+1}], 0')
    a('s_cmp_eq_u32 s30, 0')
    a('s_cbranch_scc0 L_nop2')
    a('s_waitcnt vmcnt(4)')
    a('s_branch L_wogo')
    a.label('L_nop2')
    a('s_waitcnt vmcnt(0)')
    a.label('L_wogo')
    for m in range(8):
        e, o = m >> 1, m & 1
        sel = 's77' if o else 's76'
        a(f'v_perm_b32 v{TO+2*m}, v{LO+4+e}, v{LO+e}, {sel}')
        a(f'v_perm_b32 v{TO+2*m+1}, v{LO+12+e}, v{LO+8+e}, {sel}')
    a('s_cmp_eq_u32 s30, 0')
    a('s_cbranch_scc0 L_l1_wait')
    if prof: a('s_mov_b32 s94, 0')
    a('s_branch L_l1_chk')
    a.label('L_l1')
    if prof: a('s_add_u32 s94, s94, 1')
    a('buffer_load_dwordx4 v[44:47], v42, s[36:39], s74 offen sc1')
    a('buffer_load_dwordx4 v[48:51], v42, s[36:39], s78 offen sc1')
    a('buffer_load_dwordx4 v[52:55], v43, s[36:39], s74 offen offset:64 sc1')
    a('buffer_load_dwordx4 v[64:67], v43, s[36:39], s78 offen offset:64 sc1')
    a.label('L_l1_chk')
    a('s_waitcnt vmcnt(0)')
    for i in range(4):
        a(f'v_xor_b32 v{44+i}, {TF[i]}, v{44+i}')
        a(f'v_xor_b32 v{48+i}, {TF[i]}, v{48+i}')
        a(f'v_xor_b32 v{52+i}, {TF[i]}, v{52+i}')
        a(f'v_xor_b32 v{64+i}, {TF[i]}, v{64+i}')
    a('v_or3_b32 v6, v44, v45, v46\nv_or3_b32 v6, v6, v47, v48\nv_or3_b32 v6, v6, v49, v50\nv_or3_b32 v6, v6, v51, v52')
    a('v_or3_b32 v6, v6, v53, v54\nv_or3_b32 v6, v6, v55, v64\nv_or3_b32 v6, v6, v65, v66\nv_or_b32 v6, v6, v67')
    a('v_and_b32 v6, 0xfff, v6')
    a('v_cmp_ne_u32 vcc, 0, v6')
    a('s_cbranch_vccz L_l1_done')
    if sleep_l1: a(f's_sleep {sleep_l1}')
    a('s_branch L_l1')
    a.label('L_l1_done')
    stamp(6)
    if prof: a('v_writelane_b32 v167, s94, 10')
    R8 = ['quad_perm:[1,0,3,2]', 'quad_perm:[2,3,0,1]', 'row_half_mirror']
    a('v_max_f32 v56, v52, v64')
    for ctl in R8:
        nop(2)
        dpp('v_max_f32', 'v56', 'v56', 'v56', ctl)
    a('v_sub_f32 v52, v52, v56\nv_sub_f32 v64, v64, v56')
    a('v_exp_f32 v52, v52\nv_exp_f32 v64, v64')
    nop(1)
    a('v_mul_f32 v57, v52, v53')
    a('v_fmac_f32 v57, v64, v65')
    for i in range(4):
        a(f'v_mul_f32 v{44+i}, v{44+i}, v52')
        a(f'v_fmac_f32 v{44+i}, v{48+i}, v64')
    for ctl in R8:
        nop(1)
        dpp('v_add_f32', 'v57', 'v57', 'v57', ctl)
        for i in range(4):
            dpp('v_add_f32', f'v{44+i}', f'v{44+i}', f'v{44+i}', ctl)
    nop(1)
    a('v_rcp_f32 v57, v57')
    nop(1)
    for i in range(4):
        a(f'v_mul_f32 v{44+i}, v{44+i}, v57')
    a('v_cvt_pk_bf16_f32 v58, v44, v45\nv_cvt_pk_bf16_f32 v59, v46, v47')
    a('ds_write_b64 v62, v[58:59]')
    a('v_mov_b32 v6, 1')
    a('ds_write_b32 v63, v6')
    a('s_branch L_l1_go')
    a.label('L_l1_wait')
    a('ds_read_b32 v6, v63')
    a('ds_read_b64 v[58:59], v62')
    a('s_waitcnt lgkmcnt(0)')
    a('v_readfirstlane_b32 s75, v6')
    a('s_cmp_eq_u32 s75, 0')
    a('s_cbranch_scc1 L_l1_wait')
    a.label('L_l1_go')
    nop(2)
    for m in range(8):
        a(f'v_mfma_f32_16x16x16_bf16 v[{ACC+4*m}:{ACC+4*m+3}], v[58:59], v[{TO+2*m}:{TO+2*m+1}], v[{ACC+4*m}:{ACC+4*m+3}]')
    a('v_and_b32 v6, 1, v2')
    a('v_cmp_eq_u32 vcc, 1, v6')
    nop(8)
    for i in range(4):
        a(f'v_cndmask_b32 v{44+i}, v{ACC+4*i}, v{ACC+4*(i+4)}, vcc')
    for i in range(4):
        a(f'v_and_or_b32 v{44+i}, v{44+i}, v61, {TF[i]}')
    a('s_andn2_b64 exec, exec, s[98:99]')
    a('buffer_store_dwordx4 v[44:47], v60, s[36:39], s72 offen sc1')
    a('s_mov_b64 exec, s[98:99]')
    a('buffer_store_dwordx4 v[44:47], v60, s[36:39], s72 offen')
    a('s_mov_b64 exec, -1')
    lds_set(20, 'v5', 'v6')
    stamp(7)
    if prof:
        a('s_waitcnt vmcnt(0)')
        stamp(8)
    a('s_add_u32 s30, s30, 8')
    a.label('L_fin')
    if prof:
        a(f's_lshl_b32 s92, s2, 4\ns_add_u32 s92, s92, s30\ns_lshl_b32 s92, s92, 8\ns_add_u32 s92, s92, {WS_PROF}')
        a('v_writelane_b32 v167, s96, 0')
        a('v_lshlrev_b32 v5, 2, v0')
        a('buffer_store_dword v167, v5, s[36:39], s92 offen')
    a.label('L_end')
    return wrap(a.text(), 256, 768, LDS_TOTAL, nvgpr=168, accum=168)

if __name__ == '__main__':
    st = dict(nthr=32, q_delay=60, h_delay=80, sleep_q=16, cpre=2, xt_delay=40)
    open('k14.s', 'w').write(gen(wtrig=16, **st))
    open('k14p.s', 'w').write(gen(prof=True, wtrig=16, **st))
    open('k14p_w12.s', 'w').write(gen(prof=True, wtrig=12, **st))
    open('k14p_w8.s', 'w').write(gen(prof=True, wtrig=8, **st))
```

```python
import sys, math, struct
from common import *

def f32bits(x): return struct.unpack('<I', struct.pack('<f', x))[0]

LDS_K = 0
LDS_WQ = 131072
LDS_W1 = 147456
LDS_XN0 = 155648
LDS_XN2 = 157696
LDS_Q = 159744
LDS_H = 160768
LDS_MX = 161280
LDS_LW = 161408
LDS_FL = 161536
LDS_OA = 161792
LDS_L2 = 162304
LDS_TOTAL = 163840

WS_EPOCH = 0x40000
WS_QS = 0
WS_SLOT = 0x100000
WS_Y = 0x200000
WS_XT = 0x20000
WS_HP = 0x50000
WS_QP = 0x80000
WS_PROF = 0x800000

CSCALE = (128 ** -0.5) * math.log2(math.e)

def gen(window=4, nthr=16, prof=False, sleep_q=4, sleep_l1=1, sleep_l2=1, stopP=False, noswz=False, noq=False, now='', rot=0, qk_at=8, pv0_at=12, wtrig=8, pre=0, q_delay=0, h_delay=16, burst=(0,0,0), auxexit=False, nocomp=False, mimic=True, cpre=0):
    a = Asm()
    NT = ' nt'
    def stamp(idx):
        if not prof: return
        a('s_memrealtime s[92:93]')
        a('s_waitcnt lgkmcnt(0)')
        a(f's_sub_u32 s92, s92, s96')
        a(f'v_writelane_b32 v167, s92, {idx}')
    def nop(n):
        a(f's_nop {n-1}')
    def allreduce_rows(op, v, t1, t2):
        a(f'v_mov_b32 {t1}, {v}')
        a(f'v_mov_b32 {t2}, {v}')
        nop(2)
        a(f'v_permlane16_swap_b32 {t1}, {t2}')
        nop(1)
        a(f'{op} {v}, {t1}, {t2}')
        a(f'v_mov_b32 {t1}, {v}')
        a(f'v_mov_b32 {t2}, {v}')
        nop(2)
        a(f'v_permlane32_swap_b32 {t1}, {t2}')
        nop(1)
        a(f'{op} {v}, {t1}, {t2}')
    def dpp(op, d, s0, s1, ctrl):
        a(f'{op}_dpp {d}, {s0}, {s1} {ctrl} row_mask:0xf bank_mask:0xf')
    def allreduce64_add(v, t1, t2):
        for r in (8, 4, 2, 1):
            nop(2)
            dpp('v_add_f32', v, v, v, f'row_ror:{r}')
        nop(1)
        allreduce_rows('v_add_f32', v, t1, t2)
    def lds_wait(flag_off, label, tmpa, tmpd, sreg, sleep, cmp='ne0', val=0):
        a(f'v_mov_b32 {tmpa}, {LDS_FL+flag_off}')
        a.label(label)
        a(f'ds_read_b32 {tmpd}, {tmpa}')
        a('s_waitcnt lgkmcnt(0)')
        a(f'v_readfirstlane_b32 {sreg}, {tmpd}')
        if cmp == 'ne0':
            a(f's_cmp_eq_u32 {sreg}, 0')
            a(f's_cbranch_scc0 {label}_d')
        else:
            a(f's_cmp_lt_u32 {sreg}, {val}')
            a(f's_cbranch_scc0 {label}_d')
        if sleep: a(f's_sleep {sleep}')
        a(f's_branch {label}')
        a.label(label + '_d')
    def lds_set(flag_off, tmpa, tmpd):
        a(f'v_mov_b32 {tmpa}, {LDS_FL+flag_off}\nv_mov_b32 {tmpd}, 1')
        a(f'ds_write_b32 {tmpa}, {tmpd}')
    TF = ['s84', 's85', 's86', 's87']

    a('s_cmp_ge_u32 s2, 256')
    a('s_cbranch_scc1 L_end')
    a('s_load_dwordx16 s[4:19], s[0:1], 0')
    a('s_load_dwordx8 s[20:27], s[0:1], 64')
    a('s_load_dwordx2 s[28:29], s[0:1], 96')
    if prof:
        a('s_memrealtime s[96:97]')
        a('v_mov_b32 v167, 0')
    a('v_lshrrev_b32 v1, 6, v0')
    a('v_and_b32 v0, 63, v0')
    a(f's_add_u32 s31, s2, {rot}')
    a('s_and_b32 s31, s31, 7')
    a('v_readfirstlane_b32 s30, v1')
    a('s_lshr_b32 s32, s2, 3')
    if cpre:
        a('s_cmp_eq_u32 s30, 11' if cpre == 1 else 's_cmp_eq_u32 s30, 0')
        a('s_cbranch_scc0 L_nopre')
        a('s_getpc_b64 s[40:41]')
        a('v_lshlrev_b32 v5, 7, v0')
        a('global_load_dword v164, v5, s[40:41]')
        a('v_add_u32 v5, 0x2000, v5')
        a('v_cmp_gt_u32 vcc, 40, v0')
        a('s_and_saveexec_b64 s[42:43], vcc')
        a('global_load_dword v165, v5, s[40:41]')
        a('s_mov_b64 exec, s[42:43]')
        a.label('L_nopre')
    a('v_lshrrev_b32 v2, 4, v0')
    a('v_and_b32 v3, 15, v0')
    a('v_lshlrev_b32 v4, 4, v0')
    a('s_waitcnt lgkmcnt(0)')
    a('s_mov_b32 s36, s28\ns_mov_b32 s37, s29\ns_mov_b32 s38, 0x10000000\ns_mov_b32 s39, 0x20000')
    a('s_lshr_b32 s88, s31, 2')
    a('s_lshl_b32 s89, s31, 1\ns_lshr_b32 s90, s32, 4\ns_add_u32 s89, s89, s90\ns_and_b32 s89, s89, 7')
    a('s_and_b32 s90, s32, 15')
    a('s_add_u32 s35, s31, 1\ns_and_b32 s35, s35, 3\ns_lshl_b32 s35, s35, 1\ns_lshr_b32 s34, s31, 2\ns_add_u32 s35, s35, s34')
    a(f's_lshl_b32 s33, s89, 17\ns_lshl_b32 s34, s88, 11\ns_add_u32 s33, s33, s34\ns_add_u32 s33, s33, {WS_SLOT}')
    def load_epoch():
        a(f's_load_dwordx2 s[80:81], s[28:29], {WS_EPOCH}')
    def mk_tags(aux8=False):
        a('s_waitcnt lgkmcnt(0)')
        a('s_add_u32 s82, s80, 1\ns_addc_u32 s83, s81, 0')
        a('s_and_b32 s84, s82, 0xfff')
        a('s_bfe_u32 s85, s82, 0xc000c')
        a('s_lshr_b32 s86, s82, 24\ns_lshl_b32 s87, s83, 8\ns_or_b32 s86, s86, s87\ns_and_b32 s86, s86, 0xfff')
        a('s_bfe_u32 s87, s83, 0xc0004')
        if aux8:
            a('s_and_b32 s64, s82, 0xff\ns_bfe_u32 s65, s82, 0x80008\ns_bfe_u32 s66, s82, 0x80010\ns_lshr_b32 s67, s82, 24')
    a('s_cmp_ge_u32 s30, 8')
    a('s_cbranch_scc1 L_aux')

    VV = 8; X = 72; S = 104; P = 120; T = 128
    a('s_mov_b32 s40, s6\ns_mov_b32 s41, s7\ns_mov_b32 s42, 0x2000000\ns_mov_b32 s43, 0x20000')
    a('s_mov_b32 s44, s8\ns_mov_b32 s45, s9\ns_mov_b32 s46, 0x2000000\ns_mov_b32 s47, 0x20000')
    a('s_lshl_b32 s48, s31, 5\ns_add_u32 s48, s48, s32\ns_lshl_b32 s48, s48, 17')
    a('s_lshl_b32 s49, s30, 10')
    a('s_add_u32 s48, s48, s49')
    a('s_lshl_b32 s49, s30, 14')
    a('v_lshlrev_b32 v5, 2, v2')
    a('v_lshlrev_b32 v6, 8, v2')
    for r in range(4):
        a(f'v_add_u32 v7, {r}, v5')
        a('v_xor_b32 v7, v7, v3' if not noswz else 'v_mov_b32 v7, v3')
        a(f'v_lshl_add_u32 v{140+r}, v7, 4, v6')
    seq = [('K', i) for i in range(16)] + [('V', i) for i in range(16)]
    issued = 0
    def issue(kind, i):
        nonlocal issued
        nowait = False
        if kind == 'V':
            if qk_at - burst[0] <= i < qk_at: nowait = True
            if pv0_at - burst[1] <= i < pv0_at: nowait = True
            if 16 - burst[2] <= i < 16: nowait = True
        if issued >= window and issued < nthr and not nowait:
            a(f's_waitcnt vmcnt({window-1})')
        if kind == 'K':
            a(f's_add_u32 m0, s49, {i*1024}')
            a(f's_add_u32 s50, s48, {i*8192}')
            a(f'buffer_load_dwordx4 v{140+(i&3)}, s[40:43], s50 offen{NT} lds')
        else:
            a(f's_add_u32 s50, s48, {i*8192}')
            a(f'buffer_load_dwordx4 v[{VV+4*i}:{VV+4*i+3}], v4, s[44:47], s50 offen{NT}')
        issued += 1
    k = 0
    while k < pre:
        issue(*seq[k]); k += 1
    a('s_barrier')
    while k < 4:
        issue(*seq[k]); k += 1
    load_epoch()
    a('v_lshrrev_b32 v5, 2, v3')
    a('v_lshlrev_b32 v5, 8, v5')
    a(f'v_lshl_add_u32 v5, v2, 4, v5')
    a(f'v_add_u32 v158, {LDS_Q}, v5')
    a('v_and_b32 v5, 3, v3\nv_lshlrev_b32 v5, 2, v5\nv_lshrrev_b32 v6, 2, v3\nv_add_u32 v5, v5, v6\nv_lshlrev_b32 v5, 8, v5')
    a('v_add_u32 v5, s49, v5')
    for j in range(4):
        a(f'v_or_b32 v6, {4*j}, v2')
        a('v_xor_b32 v6, v6, v3')
        a(f'v_lshl_add_u32 v{144+j}, v6, 4, v5')
    a('s_mov_b32 s56, 0x05040100\ns_mov_b32 s57, 0x07060302')
    a('v_mov_b32 v153, 0xfffff000')
    a('v_lshlrev_b32 v5, 9, v2')
    a('v_lshl_add_u32 v5, v3, 5, v5')
    a('v_add_u32 v154, s49, v5')
    a(f's_mov_b32 s52, {f32bits(math.log2(math.e) if mimic else CSCALE):#x}')
    a('v_and_b32 v148, 0x33, v0')
    a('v_lshrrev_b32 v5, 3, v0')
    a('s_lshl_b32 s53, s30, 3')
    a('v_add_u32 v5, s53, v5')
    a('v_and_b32 v6, 7, v0')
    a('v_lshlrev_b32 v7, 6, v5\nv_lshl_add_u32 v7, v6, 4, v7')
    a('s_lshl_b32 s53, s30, 4\ns_add_u32 s53, s53, 2048')
    a('v_mov_b32 v156, s53')
    a('v_cmp_gt_u32 vcc, 4, v6')
    a('v_add_u32 v157, s90, v5\nv_and_b32 v157, 15, v157\nv_lshlrev_b32 v157, 7, v157')
    a('v_cndmask_b32 v156, v156, v7, vcc')
    a('v_lshl_add_u32 v157, v5, 12, v157\nv_lshl_add_u32 v157, v6, 4, v157')
    def issue_to(n):
        nonlocal k
        while k < 16 + n:
            issue(*seq[k]); k += 1
            if k == 16 + wtrig:
                a('s_cmp_eq_u32 s30, 0')
                a('s_cbranch_scc0 L_nowt')
                lds_set(24, 'v5', 'v6')
                a.label('L_nowt')
    issue_to(qk_at)
    stamp(1)
    lds_wait(0, 'L_bq', 'v5', 'v6', 's51', 2)
    stamp(2)
    for j in range(4):
        a(f'ds_read_b128 v[{X+16+4*j}:{X+16+4*j+3}], v158 offset:{j*64}')
    a(f's_waitcnt vmcnt({min(qk_at, window)})')
    for t in range(4):
        for j in range(4):
            a(f'ds_read_b128 v[{X+4*j}:{X+4*j+3}], v{144+j} offset:{t*4096}')
        for j in range(4):
            a(f's_waitcnt lgkmcnt({3-j})')
            c = '0' if j == 0 else f'v[{S+4*t}:{S+4*t+3}]'
            a(f'v_mfma_f32_16x16x32_bf16 v[{S+4*t}:{S+4*t+3}], v[{X+4*j}:{X+4*j+3}], v[{X+16+4*j}:{X+16+4*j+3}], {c}')
    nop(8); nop(2)
    if mimic:
        a(f's_mov_b32 s60, {f32bits(128 ** -0.5):#x}\ns_mov_b32 s61, s60')
        for i in range(0, 16, 2):
            a(f'v_cvt_pk_bf16_f32 v{T+(i>>1)}, v{S+i}, v{S+i+1}')
        for i in range(0, 16, 2):
            a(f'v_lshlrev_b32 v{S+i}, 16, v{T+(i>>1)}')
            a(f'v_and_b32 v{S+i+1}, 0xffff0000, v{T+(i>>1)}')
        for i in range(0, 16, 2):
            a(f'v_pk_mul_f32 v[{S+i}:{S+i+1}], v[{S+i}:{S+i+1}], s[60:61]')
        for i in range(0, 16, 2):
            a(f'v_cvt_pk_bf16_f32 v{T+(i>>1)}, v{S+i}, v{S+i+1}')
        for i in range(0, 16, 2):
            a(f'v_lshlrev_b32 v{S+i}, 16, v{T+(i>>1)}')
            a(f'v_and_b32 v{S+i+1}, 0xffff0000, v{T+(i>>1)}')
    a(f'v_max3_f32 v5, v{S}, v{S+1}, v{S+2}')
    for i in range(3, 15, 2):
        a(f'v_max3_f32 v5, v5, v{S+i}, v{S+i+1}')
    a(f'v_max_f32 v5, v5, v{S+15}')
    allreduce_rows('v_max_f32', 'v5', 'v6', 'v7')
    a('v_mul_f32 v151, s52, v5')
    a('v_lshrrev_b32 v6, 2, v3')
    a('v_lshlrev_b32 v6, 5, v6')
    a(f's_lshl_b32 s53, s30, 2\ns_add_u32 s53, s53, {LDS_MX}')
    a('v_add_u32 v7, s53, v6')
    a('v_cmp_eq_u32 vcc, 0, v148')
    a('s_and_saveexec_b64 s[54:55], vcc')
    a('ds_write_b32 v7, v151')
    a('s_mov_b64 exec, s[54:55]')
    a(f'v_mov_b32 v149, {LDS_FL+8}\nv_mov_b32 v150, 1')
    a('v_cmp_eq_u32 vcc, 0, v0')
    a('s_and_saveexec_b64 s[54:55], vcc')
    a('ds_add_u32 v149, v150')
    a('s_mov_b64 exec, s[54:55]')
    for i in range(16):
        a(f'v_fma_f32 v{S+i}, v{S+i}, s52, -v151')
    for i in range(16):
        a(f'v_exp_f32 v{S+i}, v{S+i}')
    nop(1)
    a(f'v_add_f32 v152, v{S}, v{S+1}')
    for i in range(2, 16):
        a(f'v_add_f32 v152, v152, v{S+i}')
    for i in range(8):
        a(f'v_cvt_pk_bf16_f32 v{P+i}, v{S+2*i}, v{S+2*i+1}')
    allreduce_rows('v_add_f32', 'v152', 'v6', 'v7')
    mk_tags()
    stamp(3)
    issue_to(pv0_at)
    a(f's_waitcnt vmcnt({pv0_at-8})')
    for m in range(8):
        e, o = m >> 1, m & 1
        tb = T + 4 * (m & 1)
        sel = 's57' if o else 's56'
        for pr in range(4):
            lo = VV + 4 * (2 * pr) + e
            hi = VV + 4 * (2 * pr + 1) + e
            a(f'v_perm_b32 v{tb+pr}, v{hi}, v{lo}, {sel}')
        nop(2)
        a(f'v_mfma_f32_16x16x32_bf16 v[{X+4*m}:{X+4*m+3}], v[{P}:{P+3}], v[{tb}:{tb+3}], 0')
    issue_to(16)
    lds_wait(8, 'L_bm', 'v149', 'v150', 's51', 1, cmp='lt', val=8)
    a('v_lshrrev_b32 v6, 2, v3\nv_lshlrev_b32 v6, 5, v6')
    a(f'v_add_u32 v7, {LDS_MX}, v6')
    a(f'ds_read_b128 v[{S}:{S+3}], v7')
    a(f'ds_read_b128 v[{S+4}:{S+7}], v7 offset:16')
    a('s_waitcnt lgkmcnt(0)')
    a(f'v_max3_f32 v5, v{S}, v{S+1}, v{S+2}')
    a(f'v_max3_f32 v5, v5, v{S+3}, v{S+4}')
    a(f'v_max3_f32 v5, v5, v{S+5}, v{S+6}')
    a(f'v_max_f32 v5, v5, v{S+7}')
    a('v_and_b32 v5, 0xfffff000, v5')
    a('v_sub_f32 v155, v151, v5')
    a('v_exp_f32 v155, v155')
    a(f'v_mul_f32 v{T}, 0.125, v5'.replace('0.125', '0x3e000000'))
    a(f'v_mov_b32 v{T+2}, 0\nv_mov_b32 v{T+3}, 0')
    a(f'v_mul_f32 v{T+1}, v152, v155')
    a('v_lshrrev_b32 v6, 2, v3\nv_lshlrev_b32 v6, 4, v6')
    a('s_add_u32 s53, s49, 2048')
    a('v_add_u32 v7, s53, v6')
    a('v_cmp_eq_u32 vcc, 0, v148')
    a('s_and_saveexec_b64 s[54:55], vcc')
    a(f'ds_write_b128 v7, v[{T}:{T+3}]')
    a('s_mov_b64 exec, s[54:55]')
    a(f'v_lshlrev_b32 v7, 5, v2\nv_add_u32 v7, {LDS_MX}, v7')
    a('s_lshl_b32 s53, s30, 2')
    a('v_add_u32 v6, s53, v7')
    a(f'ds_read_b128 v[{S}:{S+3}], v7')
    a(f'ds_read_b128 v[{S+4}:{S+7}], v7 offset:16')
    a(f'ds_read_b32 v155, v6')
    a('s_waitcnt lgkmcnt(0)')
    a(f'v_max3_f32 v5, v{S}, v{S+1}, v{S+2}')
    a(f'v_max3_f32 v5, v5, v{S+3}, v{S+4}')
    a(f'v_max3_f32 v5, v5, v{S+5}, v{S+6}')
    a(f'v_max_f32 v5, v5, v{S+7}')
    a('v_and_b32 v5, 0xfffff000, v5')
    a('v_sub_f32 v155, v155, v5')
    a('v_exp_f32 v155, v155')
    stamp(4)
    for pr in range(4):
        a(f's_waitcnt vmcnt({6-2*pr})')
        if pr == 3: stamp(5)
        order = list(range(8))
        for m in order:
            e, o = m >> 1, m & 1
            sel = 's57' if o else 's56'
            lo = VV + 4 * (8 + 2 * pr) + e
            hi = VV + 4 * (8 + 2 * pr + 1) + e
            a(f'v_perm_b32 v{VV+4*m+pr}, v{hi}, v{lo}, {sel}')
            if pr == 3 and m >= 2:
                mm = m - 2
                a(f'v_mfma_f32_16x16x32_bf16 v[{X+4*mm}:{X+4*mm+3}], v[{P+4}:{P+7}], v[{VV+4*mm}:{VV+4*mm+3}], v[{X+4*mm}:{X+4*mm+3}]')
    nop(1)
    for mm in (6, 7):
        a(f'v_mfma_f32_16x16x32_bf16 v[{X+4*mm}:{X+4*mm+3}], v[{P+4}:{P+7}], v[{VV+4*mm}:{VV+4*mm+3}], v[{X+4*mm}:{X+4*mm+3}]')
    nop(4)
    for m in range(8):
        a(f'v_mul_f32 v{S+m}, v{X+4*m}, v155')
        if m == 5: nop(4)
    a(f'ds_write_b128 v154, v[{S}:{S+3}]')
    a(f'ds_write_b128 v154, v[{S+4}:{S+7}] offset:16')
    a('s_waitcnt lgkmcnt(0)')
    a('s_barrier')
    stamp(6)
    a('s_cmp_ge_u32 s30, 4')
    a('s_cbranch_scc1 L_bpub_done')
    a('v_add_u32 v6, 0x10000, v156')
    for w in range(4):
        a(f'ds_read_b128 v[{X+4*w}:{X+4*w+3}], v156 offset:{w*16384}')
    for w in range(4):
        a(f'ds_read_b128 v[{X+16+4*w}:{X+16+4*w+3}], v6 offset:{w*16384}')
    a('s_waitcnt lgkmcnt(4)')
    for i in range(0, 4, 2):
        a(f'v_pk_add_f32 v[{X+i}:{X+i+1}], v[{X+i}:{X+i+1}], v[{X+4+i}:{X+4+i+1}]')
        a(f'v_pk_add_f32 v[{X+8+i}:{X+8+i+1}], v[{X+8+i}:{X+8+i+1}], v[{X+12+i}:{X+12+i+1}]')
    a('s_waitcnt lgkmcnt(0)')
    for i in range(0, 4, 2):
        a(f'v_pk_add_f32 v[{X+16+i}:{X+16+i+1}], v[{X+16+i}:{X+16+i+1}], v[{X+20+i}:{X+20+i+1}]')
        a(f'v_pk_add_f32 v[{X+24+i}:{X+24+i+1}], v[{X+24+i}:{X+24+i+1}], v[{X+28+i}:{X+28+i+1}]')
    for i in range(0, 4, 2):
        a(f'v_pk_add_f32 v[{X+i}:{X+i+1}], v[{X+i}:{X+i+1}], v[{X+8+i}:{X+8+i+1}]')
        a(f'v_pk_add_f32 v[{X+16+i}:{X+16+i+1}], v[{X+16+i}:{X+16+i+1}], v[{X+24+i}:{X+24+i+1}]')
    for i in range(0, 4, 2):
        a(f'v_pk_add_f32 v[{X+i}:{X+i+1}], v[{X+i}:{X+i+1}], v[{X+16+i}:{X+16+i+1}]')
    for i in range(4):
        a(f'v_and_or_b32 v{X+i}, v{X+i}, v153, {TF[i]}')
    a(f'buffer_store_dwordx4 v[{X}:{X+3}], v157, s[36:39], s33 offen sc1')
    a.label('L_bpub_done')
    stamp(7)
    if prof:
        a('s_waitcnt vmcnt(0)')
        stamp(9)
    if stopP: a('s_branch L_fin')
    a('s_cmp_ge_u32 s2, 32')
    a('s_cbranch_scc1 L_fin')
    a(f's_lshl_b32 s58, s30, 12\ns_lshl_b32 s59, s2, 15\ns_add_u32 s58, s58, s59\ns_add_u32 s58, s58, {WS_Y}')
    a('s_mov_b32 s68, s24\ns_mov_b32 s69, s25\ns_mov_b32 s70, 2048\ns_mov_b32 s71, 0x20000')
    a('s_lshl_b32 s59, s2, 6')
    a('v_and_b32 v8, 31, v0\nv_lshlrev_b32 v8, 1, v8')
    lds_wait(20, 'L_by', 'v6', 'v7', 's51', 1)
    stamp(12)
    a('s_cmp_eq_u32 s30, 0')
    a('s_cbranch_scc0 L_l2')
    a('s_mov_b32 s60, s4\ns_mov_b32 s61, s5\ns_mov_b32 s62, 2048\ns_mov_b32 s63, 0x20000')
    a('s_mov_b32 s64, s22\ns_mov_b32 s65, s23\ns_mov_b32 s66, 1024\ns_mov_b32 s67, 0x20000')
    a('s_and_b32 s72, s59, 1023')
    a(f'buffer_load_ushort v9, v8, s[60:63], s59 offen')
    a(f'buffer_load_ushort v10, v8, s[64:67], s72 offen')
    a.label('L_l2')
    for t in range(4):
        a(f'buffer_load_dwordx4 v[{X+4*t}:{X+4*t+3}], v4, s[36:39], s58 offen offset:{t*1024} sc1')
    a('s_waitcnt vmcnt(0)')
    for t in range(4):
        for i in range(4):
            a(f'v_xor_b32 v{X+4*t+i}, {TF[i]}, v{X+4*t+i}')
    a(f'v_or3_b32 v7, v{X}, v{X+1}, v{X+2}')
    for i in range(3, 15, 2):
        a(f'v_or3_b32 v7, v7, v{X+i}, v{X+i+1}')
    a(f'v_or_b32 v7, v7, v{X+15}')
    a('v_and_b32 v7, 0xfff, v7')
    a('v_cmp_ne_u32 vcc, 0, v7')
    a('s_cbranch_vccz L_l2_done')
    if sleep_l2: a(f's_sleep {sleep_l2}')
    a('s_branch L_l2')
    a.label('L_l2_done')
    stamp(10)
    for i in range(4):
        a(f'v_add_f32 v{X+i}, v{X+i}, v{X+4+i}')
        a(f'v_add_f32 v{X+8+i}, v{X+8+i}, v{X+12+i}')
    for i in range(4):
        a(f'v_add_f32 v{X+i}, v{X+i}, v{X+8+i}')
    nop(1)
    for i in range(4):
        dpp('v_add_f32', f'v{X+i}', f'v{X+i}', f'v{X+i}', 'row_ror:8')
    a(f's_lshl_b32 s73, s30, 7\ns_add_u32 s73, s73, {LDS_L2}')
    a(f'v_permlane16_swap_b32 v{X}, v{X+1}')
    a(f'v_permlane16_swap_b32 v{X+2}, v{X+3}')
    a('v_and_b32 v6, 7, v0\nv_lshlrev_b32 v6, 4, v6')
    a(f'v_add_f32 v{X}, v{X}, v{X+1}')
    a(f'v_add_f32 v{X+2}, v{X+2}, v{X+3}')
    a('v_lshl_add_u32 v6, v2, 2, v6')
    nop(1)
    a(f'v_permlane32_swap_b32 v{X}, v{X+2}')
    a('v_add_u32 v6, s73, v6')
    a(f'v_add_f32 v{X}, v{X}, v{X+2}')
    a('v_and_b32 v7, 8, v0')
    a('v_cmp_eq_u32 vcc, 0, v7')
    a('s_and_saveexec_b64 s[54:55], vcc')
    a(f'ds_write_b32 v6, v{X}')
    a('s_mov_b64 exec, s[54:55]')
    a('s_waitcnt lgkmcnt(0)')
    a('s_barrier')
    stamp(11)
    a('s_cmp_eq_u32 s30, 0')
    a('s_cbranch_scc0 L_fin')
    a('v_and_b32 v6, 31, v0\nv_lshlrev_b32 v6, 2, v6')
    a(f'v_add_u32 v6, {LDS_L2}, v6')
    for w in range(8):
        a(f'ds_read_b32 v{X+w}, v6 offset:{w*128}')
    a('v_lshlrev_b32 v9, 16, v9\nv_lshlrev_b32 v10, 16, v10')
    a('v_add_f32 v9, v9, v10')
    a('s_waitcnt lgkmcnt(0)')
    a(f'v_add_f32 v{X}, v{X}, v{X+1}\nv_add_f32 v{X+2}, v{X+2}, v{X+3}\nv_add_f32 v{X+4}, v{X+4}, v{X+5}\nv_add_f32 v{X+6}, v{X+6}, v{X+7}')
    a(f'v_add_f32 v{X}, v{X}, v{X+2}\nv_add_f32 v{X+4}, v{X+4}, v{X+6}')
    a(f'v_add_f32 v{X}, v{X}, v{X+4}')
    a(f'v_add_f32 v{X}, v{X}, v9')
    a(f'v_cvt_pk_bf16_f32 v{X}, v{X}, v{X}')
    a('v_cmp_gt_u32 vcc, 32, v0')
    a('s_and_saveexec_b64 s[54:55], vcc')
    a(f'buffer_store_short v{X}, v8, s[68:71], s59 offen')
    a('s_mov_b64 exec, s[54:55]')
    stamp(8)
    a('s_cmp_eq_u32 s2, 0')
    a('s_cbranch_scc0 L_fin')
    a(f'v_mov_b32 v{X+2}, s82\nv_mov_b32 v{X+3}, s83\nv_mov_b32 v6, {WS_EPOCH}')
    a('v_cmp_eq_u32 vcc, 0, v0')
    a('s_and_saveexec_b64 s[54:55], vcc')
    a(f'buffer_store_dwordx2 v[{X+2}:{X+3}], v6, s[36:39], 0 offen')
    a('s_mov_b64 exec, s[54:55]')
    a('s_branch L_fin')

    a.label('L_aux')
    a('s_sub_u32 s30, s30, 8')
    a('s_setprio 3')
    a('s_mov_b32 s40, s4\ns_mov_b32 s41, s5\ns_mov_b32 s42, 2048\ns_mov_b32 s43, 0x20000')
    a('s_mov_b32 s44, s10\ns_mov_b32 s45, s11\ns_mov_b32 s46, 0x400000\ns_mov_b32 s47, 0x20000')
    a(f's_mov_b32 s48, s16\ns_mov_b32 s49, s17\ns_mov_b32 s50, {512*1792*2}\ns_mov_b32 s51, 0x20000')
    a('s_mov_b32 s52, s12\ns_mov_b32 s53, s13\ns_mov_b32 s54, 0x400000\ns_mov_b32 s55, 0x20000')
    a(f's_mov_b32 s56, s20\ns_mov_b32 s57, s21\ns_mov_b32 s58, {512*1792*2}\ns_mov_b32 s59, 0x20000')
    a('s_mov_b32 s60, s18\ns_mov_b32 s61, s19\ns_mov_b32 s62, 3584\ns_mov_b32 s63, 0x20000')
    a('s_mul_i32 s68, s35, 28\ns_add_u32 s68, s68, s32')
    a('s_cmp_eq_u32 s30, 0\ns_cbranch_scc1 L_a0')
    a('s_cmp_eq_u32 s30, 1\ns_cbranch_scc1 L_a1')
    a('s_cmp_eq_u32 s30, 2\ns_cbranch_scc1 L_a2')
    a(f'v_mov_b32 v5, {LDS_FL}\nv_lshl_add_u32 v5, v0, 2, v5\nv_mov_b32 v6, 0')
    a('v_cmp_gt_u32 vcc, 8, v0')
    a('s_and_saveexec_b64 s[70:71], vcc')
    a('ds_write_b32 v5, v6')
    a('s_mov_b64 exec, s[70:71]')
    a('s_waitcnt lgkmcnt(0)')
    a('s_barrier')
    load_epoch()
    mk_tags(True)
    a('s_getreg_b32 s72, hwreg(HW_REG_XCC_ID)')
    a('v_mov_b32 v8, s72\nv_mov_b32 v9, 0\nv_mov_b32 v10, s82\nv_mov_b32 v11, s83')
    a(f's_lshl_b32 s72, s2, 4\ns_add_u32 s72, s72, {WS_XT}')
    a('v_mov_b32 v5, 0')
    a('v_cmp_eq_u32 vcc, 0, v0')
    a('s_and_saveexec_b64 s[70:71], vcc')
    a('buffer_store_dwordx4 v[8:11], v5, s[36:39], s72 offen sc1')
    a('s_mov_b64 exec, s[70:71]')
    a('s_branch L_acommon')

    def layernorm():
        for b in range(2):
            src = 8 + 4 * b
            F = 16
            for i in range(4):
                a(f'v_lshlrev_b32 v{F+2*i}, 16, v{src+i}')
                a(f'v_and_b32 v{F+2*i+1}, 0xffff0000, v{src+i}')
            a(f'v_add_f32 v24, v{F}, v{F+1}')
            for i in range(2, 8):
                a(f'v_add_f32 v24, v24, v{F+i}')
            allreduce64_add('v24', 'v26', 'v27')
            a(f'v_mul_f32 v24, {f32bits(1.0/512):#x}, v24')
            a('v_mov_b32 v25, 0')
            for i in range(8):
                a(f'v_sub_f32 v26, v{F+i}, v24')
                a('v_fmac_f32 v25, v26, v26')
            allreduce64_add('v25', 'v26', 'v27')
            a(f'v_mul_f32 v25, {f32bits(1.0/512):#x}, v25')
            a('v_cvt_pk_bf16_f32 v26, v24, v25')
            a('v_lshlrev_b32 v24, 16, v26')
            a('v_and_b32 v25, 0xffff0000, v26')
            a(f'v_add_f32 v25, {f32bits(1e-5):#x}, v25')
            a('v_cvt_pk_bf16_f32 v25, v25, v25')
            a('v_and_b32 v25, 0xffff0000, v25')
            a('v_sqrt_f32 v25, v25')
            nop(1)
            a('v_cvt_pk_bf16_f32 v25, v25, v25')
            a('v_and_b32 v25, 0xffff0000, v25')
            a('v_rcp_f32 v28, v25')
            for i in range(8):
                a(f'v_sub_f32 v{F+i}, v{F+i}, v24')
            for i in range(4):
                a(f'v_cvt_pk_bf16_f32 v26, v{F+2*i}, v{F+2*i+1}')
                a(f'v_lshlrev_b32 v{F+2*i}, 16, v26')
                a(f'v_and_b32 v{F+2*i+1}, 0xffff0000, v26')
            for i in range(8):
                a(f'v_mul_f32 v26, v{F+i}, v28')
                a(f'v_fma_f32 v27, -v26, v25, v{F+i}')
                a(f'v_fma_f32 v{F+i}, v27, v28, v26')
            for i in range(4):
                a(f'v_cvt_pk_bf16_f32 v{src+i}, v{F+2*i}, v{F+2*i+1}')

    def proj(tile_base, xn_addr_s, nks):
        a('v_lshrrev_b32 v5, 2, v3\nv_lshl_add_u32 v5, v2, 3, v5\nv_lshlrev_b32 v5, 7, v5\nv_and_b32 v6, 3, v3\nv_lshl_add_u32 v5, v6, 3, v5')
        a(f'v_add_u32 v5, {tile_base}, v5')
        a('v_lshrrev_b32 v30, 3, v3')
        a('v_lshlrev_b32 v30, 10, v30')
        a('v_lshl_add_u32 v30, v2, 4, v30')
        a(f'v_add_u32 v30, {xn_addr_s}, v30')
        for ks in range(nks):
            a(f'ds_read_b128 v[48:51], v30 offset:{ks*64}')
            for ct in range(4):
                a(f'ds_read_b64_tr_b16 v[{32+4*ct}:{33+4*ct}], v5 offset:{ks*4096+ct*32}')
                a(f'ds_read_b64_tr_b16 v[{34+4*ct}:{35+4*ct}], v5 offset:{ks*4096+ct*32+512}')
            for ct in range(4):
                a(f's_waitcnt lgkmcnt({2*(3-ct)})')
                c = '0' if ks == 0 else f'v[{64+4*ct}:{67+4*ct}]'
                a(f'v_mfma_f32_16x16x32_bf16 v[{64+4*ct}:{67+4*ct}], v[{32+4*ct}:{35+4*ct}], v[48:51], {c}')
        nop(8); nop(2)
        a('v_and_b32 v6, 3, v3')
        for i in range(4): a(f'v_mov_b32 v{16+i}, v{64+i}')
        for ct in range(1, 4):
            a(f'v_cmp_eq_u32 vcc, {ct}, v6')
            nop(2)
            for i in range(4): a(f'v_cndmask_b32 v{16+i}, v{16+i}, v{64+4*ct+i}, vcc')
        a('v_mov_b32 v20, 0xffffff00')
        for i in range(4): a(f'v_add_u32 v{16+i}, 0x80, v{16+i}')
        for i in range(4): a(f'v_and_or_b32 v{16+i}, v{16+i}, v20, s{64+i}')
        a('v_lshlrev_b32 v7, 6, v6\nv_lshl_add_u32 v7, v2, 4, v7')
        a('v_and_b32 v6, 4, v3')
        a('v_cmp_eq_u32 vcc, 0, v6')

    a.label('L_a0')
    a('buffer_load_dwordx4 v[8:11], v4, s[40:43], 0 offen')
    a('buffer_load_dwordx4 v[12:15], v4, s[40:43], 0 offen offset:1024')
    a('v_lshrrev_b32 v5, 3, v0\nv_lshlrev_b32 v5, 13, v5\nv_and_b32 v6, 7, v0\nv_lshl_add_u32 v5, v6, 4, v5')
    a('s_lshl_b32 s72, s35, 10\ns_and_b32 s73, s32, 7\ns_lshl_b32 s73, s73, 7\ns_add_u32 s72, s72, s73')
    a('s_lshr_b32 s73, s32, 3\ns_lshl_b32 s73, s73, 20\ns_add_u32 s72, s72, s73')
    for i in range(16):
        a(f's_mov_b32 m0, {LDS_WQ + i*1024}')
        if 'q' not in now: a(f'buffer_load_dwordx4 v5, s[44:47], s72 offen{NT} lds')
        if i < 15: a(f's_add_u32 s72, s72, {8*8192}')
    a('s_barrier')
    load_epoch()
    a('s_waitcnt vmcnt(16)' if 'q' not in now else 's_waitcnt vmcnt(0)')
    mk_tags(True)
    stamp(1)
    layernorm()
    a(f'v_add_u32 v5, {LDS_XN0}, v4')
    a('ds_write_b128 v5, v[8:11]')
    a('ds_write_b128 v5, v[12:15] offset:1024')
    a('s_waitcnt vmcnt(0) lgkmcnt(0)')
    stamp(2)
    a(f's_lshr_b32 s73, s32, 3\ns_lshl_b32 s73, s73, 8\ns_add_u32 s73, s73, {LDS_XN0}')
    proj(LDS_WQ, 's73', 4)
    a('v_lshrrev_b32 v6, 3, v3\nv_lshl_add_u32 v7, v6, 13, v7')
    a(f's_lshl_b32 s69, s35, 14\ns_lshr_b32 s72, s32, 3\ns_lshl_b32 s72, s72, 11\ns_add_u32 s69, s69, s72\ns_and_b32 s72, s32, 7\ns_lshl_b32 s72, s72, 8\ns_add_u32 s69, s69, s72\ns_add_u32 s69, s69, {WS_QP}')
    a('s_and_saveexec_b64 s[70:71], vcc')
    a('buffer_store_dwordx4 v[16:19], v7, s[36:39], s69 offen sc1')
    a('s_mov_b64 exec, s[70:71]')
    lds_set(12, 'v5', 'v6')
    stamp(3)
    a('s_branch L_acommon')

    a.label('L_a1')
    a('s_barrier')
    load_epoch()
    mk_tags(True)
    lds_wait(12, 'L_a1_p', 'v5', 'v6', 's75', 4)
    stamp(1)
    a(f's_lshl_b32 s72, s89, 14\ns_lshl_b32 s73, s88, 13\ns_add_u32 s72, s72, s73\ns_add_u32 s72, s72, {WS_QP}')
    a('s_add_u32 s73, s72, 4096')
    if noq: a('s_branch L_a1_qd')
    if q_delay: a(f's_sleep {q_delay}')
    a.label('L_a1_q')
    for d in range(4):
        sr = 's72' if d < 2 else 's73'
        a(f'buffer_load_dwordx4 v[{8+8*d}:{11+8*d}], v4, s[36:39], {sr} offen offset:{(d&1)*2048} sc1')
        a(f'buffer_load_dwordx4 v[{12+8*d}:{15+8*d}], v4, s[36:39], {sr} offen offset:{(d&1)*2048+1024} sc1')
    a('s_waitcnt vmcnt(0)')
    for r in range(8, 40):
        a(f'v_xor_b32 v{r}, s{64+(r&3)}, v{r}')
    a('v_or3_b32 v6, v8, v9, v10')
    for r in range(11, 39, 2):
        a(f'v_or3_b32 v6, v6, v{r}, v{r+1}')
    a('v_or_b32 v6, v6, v39')
    a('v_and_b32 v6, 0xff, v6')
    a('v_cmp_ne_u32 vcc, 0, v6')
    a('s_cbranch_vccz L_a1_qd')
    if sleep_q: a(f's_sleep {sleep_q}')
    a('s_branch L_a1_q')
    a.label('L_a1_qd')
    for r in range(0, 8, 2):
        a(f'v_pk_add_f32 v[{8+r}:{9+r}], v[{8+r}:{9+r}], v[{16+r}:{17+r}]')
        a(f'v_pk_add_f32 v[{24+r}:{25+r}], v[{24+r}:{25+r}], v[{32+r}:{33+r}]')
    for r in range(0, 8, 2):
        a(f'v_pk_add_f32 v[{8+r}:{9+r}], v[{8+r}:{9+r}], v[{24+r}:{25+r}]')
    a('v_cvt_pk_bf16_f32 v16, v8, v9\nv_cvt_pk_bf16_f32 v17, v10, v11\nv_cvt_pk_bf16_f32 v18, v12, v13\nv_cvt_pk_bf16_f32 v19, v14, v15')
    a(f'v_lshlrev_b32 v5, 3, v0\nv_add_u32 v5, {LDS_Q}, v5')
    a('ds_write_b64 v5, v[16:17]')
    a('ds_write_b64 v5, v[18:19] offset:512')
    a('s_waitcnt lgkmcnt(0)')
    lds_set(0, 'v5', 'v6')
    stamp(2)
    a('s_branch L_acommon')

    a.label('L_a2')
    a('s_cmp_ge_u32 s32, 28')
    a('s_cbranch_scc1 L_a2_skip')
    a('buffer_load_dwordx4 v[8:11], v4, s[40:43], 0 offen')
    a('buffer_load_dwordx4 v[12:15], v4, s[40:43], 0 offen offset:1024')
    a('s_mov_b32 s72, 3584\nv_lshrrev_b32 v5, 3, v0\nv_mul_lo_u32 v5, v5, s72\nv_and_b32 v6, 7, v0\nv_lshl_add_u32 v5, v6, 4, v5')
    a(f's_mul_i32 s72, s35, {64*3584}\ns_lshl_b32 s73, s32, 7\ns_add_u32 s72, s72, s73')
    for i in range(8):
        a(f's_mov_b32 m0, {LDS_W1 + i*1024}')
        if '1' not in now: a(f'buffer_load_dwordx4 v5, s[48:51], s72 offen{NT} lds')
        if i < 7: a(f's_add_u32 s72, s72, {8*3584}')
    a('v_and_b32 v6, 1, v2\nv_lshlrev_b32 v6, 3, v6')
    a('s_lshl_b32 s72, s68, 4')
    a('buffer_load_dwordx2 v[80:81], v6, s[60:63], s72 offen')
    a('s_barrier')
    load_epoch()
    a('s_waitcnt vmcnt(9)' if '1' not in now else 's_waitcnt vmcnt(1)')
    mk_tags(True)
    layernorm()
    a(f'v_add_u32 v5, {LDS_XN2}, v4')
    a('ds_write_b128 v5, v[8:11]')
    a('ds_write_b128 v5, v[12:15] offset:1024')
    a('s_waitcnt vmcnt(0) lgkmcnt(0)')
    a(f's_lshl_b32 s73, s35, 7\ns_add_u32 s73, s73, {LDS_XN2}')
    proj(LDS_W1, 's73', 2)
    a('v_lshrrev_b32 v6, 3, v3\nv_lshl_add_u32 v7, v6, 8, v7')
    a(f's_lshl_b32 s69, s32, 12\ns_lshl_b32 s72, s35, 9\ns_add_u32 s69, s69, s72\ns_add_u32 s69, s69, {WS_HP}')
    a('s_and_saveexec_b64 s[70:71], vcc')
    a('buffer_store_dwordx4 v[16:19], v7, s[36:39], s69 offen sc1')
    a('s_mov_b64 exec, s[70:71]')
    a('v_and_b32 v5, 7, v3\nv_lshlrev_b32 v5, 9, v5\nv_lshrrev_b32 v6, 3, v3\nv_lshl_add_u32 v5, v6, 8, v5\nv_and_b32 v6, 1, v2\nv_lshl_add_u32 v5, v6, 4, v5')
    a(f's_lshr_b32 s72, s68, 3\ns_lshl_b32 s72, s72, 12\ns_and_b32 s73, s68, 7\ns_lshl_b32 s73, s73, 5\ns_add_u32 s72, s72, s73\ns_add_u32 s72, s72, {WS_HP}')
    a(f's_sleep {h_delay}')
    a.label('L_a2_h')
    a('buffer_load_dwordx4 v[64:67], v5, s[36:39], s72 offen sc1')
    a('s_waitcnt vmcnt(0)')
    for i in range(4): a(f'v_xor_b32 v{64+i}, s{64+i}, v{64+i}')
    a('v_or3_b32 v6, v64, v65, v66\nv_or_b32 v6, v6, v67\nv_and_b32 v6, 0xff, v6')
    a('v_cmp_ne_u32 vcc, 0, v6')
    a('s_cbranch_vccz L_a2_hd')
    a('s_sleep 8')
    a('s_branch L_a2_h')
    a.label('L_a2_hd')
    for ctl in ['quad_perm:[1,0,3,2]', 'quad_perm:[2,3,0,1]', 'row_half_mirror']:
        nop(1)
        for i in range(4):
            dpp('v_add_f32', f'v{64+i}', f'v{64+i}', f'v{64+i}', ctl)
    nop(1)
    a('v_cvt_pk_bf16_f32 v68, v64, v65\nv_cvt_pk_bf16_f32 v69, v66, v67')
    a('v_lshlrev_b32 v64, 16, v68\nv_and_b32 v65, 0xffff0000, v68\nv_lshlrev_b32 v66, 16, v69\nv_and_b32 v67, 0xffff0000, v69')
    a('v_lshlrev_b32 v72, 16, v80\nv_and_b32 v73, 0xffff0000, v80\nv_lshlrev_b32 v74, 16, v81\nv_and_b32 v75, 0xffff0000, v81')
    for i in range(4):
        a(f'v_add_f32 v{64+i}, v{64+i}, v{72+i}')
    a('v_cvt_pk_bf16_f32 v68, v64, v65\nv_cvt_pk_bf16_f32 v69, v66, v67')
    a('v_lshlrev_b32 v64, 16, v68\nv_and_b32 v65, 0xffff0000, v68\nv_lshlrev_b32 v66, 16, v69\nv_and_b32 v67, 0xffff0000, v69')
    kk = -2.0 * math.sqrt(2.0 / math.pi) * math.log2(math.e)
    a(f's_mov_b32 s72, {f32bits(0.044715):#x}\ns_mov_b32 s73, {f32bits(kk):#x}')
    for i in range(4):
        x = f'v{64+i}'; t = f'v{72+i}'
        a(f'v_mul_f32 {t}, {x}, {x}')
        a(f'v_mul_f32 {t}, {t}, {x}')
        a(f'v_fma_f32 {t}, {t}, s72, {x}')
        a(f'v_mul_f32 {t}, s73, {t}')
        a(f'v_exp_f32 {t}, {t}')
        nop(1)
        a(f'v_add_f32 {t}, 1.0, {t}')
        a(f'v_rcp_f32 {t}, {t}')
        nop(1)
        a(f'v_mul_f32 {x}, {x}, {t}')
    a('v_cvt_pk_bf16_f32 v68, v64, v65\nv_cvt_pk_bf16_f32 v69, v66, v67')
    a('v_cmp_gt_u32 vcc, 2, v2')
    nop(2)
    a('v_cndmask_b32 v68, 0, v68, vcc\nv_cndmask_b32 v69, 0, v69, vcc')
    a(f'v_lshlrev_b32 v5, 3, v0\nv_add_u32 v5, {LDS_H}, v5')
    a('ds_write_b64 v5, v[68:69]')
    a('s_waitcnt lgkmcnt(0)')
    lds_set(4, 'v5', 'v6')
    a('s_branch L_acommon')
    a.label('L_a2_skip')
    a('s_barrier')
    load_epoch()
    mk_tags(True)

    a.label('L_acommon')
    LO = 76; L2 = 92; TO = 108; T2 = 124; ACC = 8
    if auxexit:
        a('s_add_u32 s30, s30, 8')
        a('s_branch L_fin')
    if wtrig > 0: lds_wait(24, 'L_aw', 'v5', 'v6', 's75', 8)
    a('v_lshlrev_b32 v5, 12, v2\nv_lshl_add_u32 v5, v3, 4, v5')
    a('s_lshl_b32 s72, s35, 9\ns_lshl_b32 s73, s32, 4\ns_add_u32 s72, s72, s73\ns_lshl_b32 s72, s72, 10')
    a('s_lshl_b32 s73, s30, 8\ns_add_u32 s72, s72, s73')
    for i in range(4):
        if 'o' not in now: a(f'buffer_load_dwordx4 v[{LO+4*i}:{LO+4*i+3}], v5, s[52:55], s72 offen offset:{i*1024}{NT}')
    a('s_mov_b32 s76, 0x05040100\ns_mov_b32 s77, 0x07060302')
    a('s_cmp_ge_u32 s32, 28')
    a('s_cbranch_scc1 L_nomlp')
    a('v_and_b32 v6, 1, v2\nv_lshlrev_b32 v6, 12, v6\nv_lshl_add_u32 v6, v3, 4, v6')
    a('s_lshl_b32 s74, s68, 13\ns_add_u32 s74, s74, s73')
    for i in range(4):
        if '2' not in now: a(f'buffer_load_dwordx4 v[{L2+4*i}:{L2+4*i+3}], v6, s[56:59], s74 offen offset:{i*1024}{NT}')
    lds_wait(4, 'L_ah', 'v5', 'v6', 's75', 4)
    a(f'v_lshlrev_b32 v5, 3, v0\nv_add_u32 v5, {LDS_H}, v5')
    a('ds_read_b64 v[40:41], v5')
    a('s_waitcnt vmcnt(0) lgkmcnt(0)')
    for m in range(8):
        e, o = m >> 1, m & 1
        sel = 's77' if o else 's76'
        a(f'v_perm_b32 v{T2+2*m}, v{L2+4+e}, v{L2+e}, {sel}')
        a(f'v_perm_b32 v{T2+2*m+1}, v{L2+12+e}, v{L2+8+e}, {sel}')
    nop(2)
    for m in range(8):
        a(f'v_mfma_f32_16x16x16_bf16 v[{ACC+4*m}:{ACC+4*m+3}], v[40:41], v[{T2+2*m}:{T2+2*m+1}], 0')
    a('s_branch L_mlpdone')
    a.label('L_nomlp')
    for i in range(32):
        a(f'v_mov_b32 v{ACC+i}, 0')
    a('s_waitcnt vmcnt(0)')
    a.label('L_mlpdone')
    for m in range(8):
        e, o = m >> 1, m & 1
        sel = 's77' if o else 's76'
        a(f'v_perm_b32 v{TO+2*m}, v{LO+4+e}, v{LO+e}, {sel}')
        a(f'v_perm_b32 v{TO+2*m+1}, v{LO+12+e}, v{LO+8+e}, {sel}')
    a('v_lshrrev_b32 v5, 3, v3\nv_lshlrev_b32 v5, 4, v5\nv_and_b32 v6, 7, v3\nv_add_u32 v5, v5, v6')
    a('v_lshlrev_b32 v43, 7, v5')
    a('v_lshl_add_u32 v42, v2, 4, v43')
    a(f's_lshl_b32 s72, s35, 17\ns_add_u32 s72, s72, {WS_SLOT}')
    a('s_lshl_b32 s74, s32, 12\ns_add_u32 s74, s74, s72')
    a(f's_add_u32 s78, s74, {8*128}')
    a('v_and_b32 v6, 1, v2')
    a('v_lshrrev_b32 v5, 1, v2\nv_lshlrev_b32 v5, 4, v5\nv_lshrrev_b32 v7, 2, v3\nv_add_u32 v5, v5, v7')
    a('s_lshl_b32 s72, s30, 2')
    a('v_add_u32 v5, s72, v5')
    a('v_add_u32 v7, s2, v5\nv_and_b32 v7, 255, v7\nv_lshlrev_b32 v7, 7, v7')
    a('v_lshl_add_u32 v5, v5, 15, v7')
    a('v_and_b32 v7, 3, v3\nv_lshl_add_u32 v5, v7, 5, v5\nv_lshl_add_u32 v60, v6, 4, v5')
    a(f's_mov_b32 s72, {WS_Y}')
    a('v_lshrrev_b32 v5, 15, v60\nv_lshlrev_b32 v5, 4, v5')
    a(f's_mov_b32 s73, {WS_XT}')
    a.label('L_xt')
    a('buffer_load_dwordx4 v[44:47], v5, s[36:39], s73 offen sc1')
    a('s_waitcnt vmcnt(0)')
    a('v_xor_b32 v46, s82, v46\nv_xor_b32 v47, s83, v47\nv_or_b32 v46, v46, v47')
    a('v_cmp_ne_u32 vcc, 0, v46')
    a('s_cbranch_vccz L_xt_d')
    a('s_sleep 8')
    a('s_branch L_xt')
    a.label('L_xt_d')
    a('s_getreg_b32 s73, hwreg(HW_REG_XCC_ID)')
    a('v_cmp_eq_u32 s[98:99], s73, v44')
    a('v_mov_b32 v61, 0xfffff000')
    a(f'v_lshlrev_b32 v62, 3, v0\nv_add_u32 v62, {LDS_OA}, v62')
    a(f'v_mov_b32 v63, {LDS_FL+16}')
    stamp(4)
    a('s_barrier')
    stamp(5)
    if stopP:
        a('s_add_u32 s30, s30, 8')
        a('s_branch L_fin')
    a('s_cmp_eq_u32 s30, 0')
    a('s_cbranch_scc0 L_l1_wait')
    if prof: a('s_mov_b32 s94, 0')
    a.label('L_l1')
    if prof: a('s_add_u32 s94, s94, 1')
    a('buffer_load_dwordx4 v[44:47], v42, s[36:39], s74 offen sc1')
    a('buffer_load_dwordx4 v[48:51], v42, s[36:39], s78 offen sc1')
    a('buffer_load_dwordx4 v[52:55], v43, s[36:39], s74 offen offset:64 sc1')
    a('buffer_load_dwordx4 v[64:67], v43, s[36:39], s78 offen offset:64 sc1')
    a('s_waitcnt vmcnt(0)')
    for i in range(4):
        a(f'v_xor_b32 v{44+i}, {TF[i]}, v{44+i}')
        a(f'v_xor_b32 v{48+i}, {TF[i]}, v{48+i}')
        a(f'v_xor_b32 v{52+i}, {TF[i]}, v{52+i}')
        a(f'v_xor_b32 v{64+i}, {TF[i]}, v{64+i}')
    a('v_or3_b32 v6, v44, v45, v46\nv_or3_b32 v6, v6, v47, v48\nv_or3_b32 v6, v6, v49, v50\nv_or3_b32 v6, v6, v51, v52')
    a('v_or3_b32 v6, v6, v53, v54\nv_or3_b32 v6, v6, v55, v64\nv_or3_b32 v6, v6, v65, v66\nv_or_b32 v6, v6, v67')
    a('v_and_b32 v6, 0xfff, v6')
    a('v_cmp_ne_u32 vcc, 0, v6')
    a('s_cbranch_vccz L_l1_done')
    if sleep_l1: a(f's_sleep {sleep_l1}')
    a('s_branch L_l1')
    a.label('L_l1_done')
    stamp(6)
    if prof: a('v_writelane_b32 v167, s94, 10')
    R8 = ['quad_perm:[1,0,3,2]', 'quad_perm:[2,3,0,1]', 'row_half_mirror']
    a('v_max_f32 v56, v52, v64')
    for ctl in R8:
        nop(2)
        dpp('v_max_f32', 'v56', 'v56', 'v56', ctl)
    a('v_sub_f32 v52, v52, v56\nv_sub_f32 v64, v64, v56')
    a('v_exp_f32 v52, v52\nv_exp_f32 v64, v64')
    nop(1)
    a('v_mul_f32 v57, v52, v53')
    a('v_fmac_f32 v57, v64, v65')
    for i in range(4):
        a(f'v_mul_f32 v{44+i}, v{44+i}, v52')
        a(f'v_fmac_f32 v{44+i}, v{48+i}, v64')
    for ctl in R8:
        nop(1)
        dpp('v_add_f32', 'v57', 'v57', 'v57', ctl)
        for i in range(4):
            dpp('v_add_f32', f'v{44+i}', f'v{44+i}', f'v{44+i}', ctl)
    nop(1)
    a('v_rcp_f32 v57, v57')
    nop(1)
    for i in range(4):
        a(f'v_mul_f32 v{44+i}, v{44+i}, v57')
    a('v_cvt_pk_bf16_f32 v58, v44, v45\nv_cvt_pk_bf16_f32 v59, v46, v47')
    a('ds_write_b64 v62, v[58:59]')
    a('v_mov_b32 v6, 1')
    a('ds_write_b32 v63, v6')
    a('s_branch L_l1_go')
    a.label('L_l1_wait')
    a('ds_read_b32 v6, v63')
    a('ds_read_b64 v[58:59], v62')
    a('s_waitcnt lgkmcnt(0)')
    a('v_readfirstlane_b32 s75, v6')
    a('s_cmp_eq_u32 s75, 0')
    a('s_cbranch_scc1 L_l1_wait')
    a.label('L_l1_go')
    nop(2)
    for m in range(8):
        a(f'v_mfma_f32_16x16x16_bf16 v[{ACC+4*m}:{ACC+4*m+3}], v[58:59], v[{TO+2*m}:{TO+2*m+1}], v[{ACC+4*m}:{ACC+4*m+3}]')
    a('v_and_b32 v6, 1, v2')
    a('v_cmp_eq_u32 vcc, 1, v6')
    nop(8)
    for i in range(4):
        a(f'v_cndmask_b32 v{44+i}, v{ACC+4*i}, v{ACC+4*(i+4)}, vcc')
    for i in range(4):
        a(f'v_and_or_b32 v{44+i}, v{44+i}, v61, {TF[i]}')
    a('s_andn2_b64 exec, exec, s[98:99]')
    a('buffer_store_dwordx4 v[44:47], v60, s[36:39], s72 offen sc1')
    a('s_mov_b64 exec, s[98:99]')
    a('buffer_store_dwordx4 v[44:47], v60, s[36:39], s72 offen')
    a('s_mov_b64 exec, -1')
    lds_set(20, 'v5', 'v6')
    stamp(7)
    if prof:
        a('s_waitcnt vmcnt(0)')
        stamp(8)
    a('s_add_u32 s30, s30, 8')
    a.label('L_fin')
    if prof:
        a(f's_lshl_b32 s92, s2, 4\ns_add_u32 s92, s92, s30\ns_lshl_b32 s92, s92, 8\ns_add_u32 s92, s92, {WS_PROF}')
        a('v_writelane_b32 v167, s96, 0')
        a('v_lshlrev_b32 v5, 2, v0')
        a('buffer_store_dword v167, v5, s[36:39], s92 offen')
    a.label('L_end')
    return wrap(a.text(), 256, 768, LDS_TOTAL, nvgpr=168, accum=168)

if __name__ == '__main__':
    st = dict(nthr=32, q_delay=60, h_delay=80, sleep_q=16, wtrig=16)
    open('k13p_c2.s', 'w').write(gen(prof=True, cpre=2, **st))
    open('k13.s', 'w').write(gen(cpre=2, **st))
```
